```python
import torch

def _softmax(x, axis=-1):
    return torch.softmax(x, dim=axis)
def _gelu(x):
    return torch.nn.functional.gelu(x, approximate="tanh")
def _silu(x):
    return torch.nn.functional.silu(x)
def _sigmoid(x):
    return torch.sigmoid(x)
def _layernorm(x, axis=-1, eps=1e-5):
    m = x.mean(dim=axis, keepdim=True)
    v = x.var(dim=axis, keepdim=True, unbiased=False)
    return (x - m) / torch.sqrt(v + eps)
def _scatter_add(tgt, idx, src, axis=0):
    return tgt.clone().index_add_(axis, idx, src)
def _segment_sum(src, seg, n):
    out = torch.zeros((n,) + src.shape[1:], dtype=src.dtype)
    return out.index_add_(0, seg, src)
def _pad(x, pw):
    flat = tuple(v for pair in reversed(pw) for v in pair)
    return torch.nn.functional.pad(x, flat)

kernel_name = 'gated_mix__softmax_full_mha__dense_activation_gelu__prompt'

def setup_inputs():

    _w = (lambda a: (lambda t: t.to(torch.bfloat16) if t.is_floating_point() else t)(torch.as_tensor(a)))
    def _A_setup():
        B, S, D = 1, 2048, 512
        return {
            "x": _w((lambda *s: torch.randn(*s, dtype=torch.bfloat16) * 0.05)(B, S, D)),
            "wqkv": _w((lambda *s: torch.randn(*s, dtype=torch.bfloat16) * 0.8)(D, 3 * D)),
            "wo": _w((lambda *s: torch.randn(*s, dtype=torch.bfloat16) * 0.05)(D, D)),
        }
    _A_in = _A_setup()

    def _B_setup():
        B, S, D, F = 1, 2048, 512, 1792
        return {
            "x": _w((lambda *s: torch.randn(*s, dtype=torch.bfloat16) * 0.05)(B, S, D)),
            "w1": _w((lambda *s: torch.randn(*s, dtype=torch.bfloat16) * 3.2)(D, F) * (D ** -0.5)),
            "b1": _w((lambda *s: torch.randn(*s, dtype=torch.bfloat16) * 3.2)(F) * 0.01),
            "w2": _w((lambda *s: torch.randn(*s, dtype=torch.bfloat16) * 0.8)(F, D) * (F ** -0.5)),
            "b2": _w((lambda *s: torch.randn(*s, dtype=torch.bfloat16) * 1.6)(D) * 0.01),
        }
    _B_in = _B_setup()

    return {
        "A_x": _A_in["x"],
        "A_wqkv": _A_in["wqkv"],
        "A_wo": _A_in["wo"],
        "B_x": _B_in["x"],
        "B_w1": _B_in["w1"],
        "B_b1": _B_in["b1"],
        "B_w2": _B_in["w2"],
        "B_b2": _B_in["b2"],
        "gate_w": _w((lambda *s: torch.randn(*s, dtype=torch.bfloat16) * 0.05)(512) * 16.0),
    }

def reference(A_x, A_wqkv, A_wo, B_x, B_w1, B_b1, B_w2, B_b2, gate_w):
    def _A_ref(x, wqkv, wo):
        B, S, D = x.shape
        H = 32; Dh = D // H
        qkv = (lambda x, *d: x.permute(*d))((x @ wqkv).reshape(B, S, 3, H, Dh), 2, 0, 3, 1, 4)
        q, k, v = qkv[0], qkv[1], qkv[2]
        scale = Dh ** -0.5
        scores = torch.einsum("bhqd,bhkd->bhqk", q, k) * scale
        p = _softmax(scores, axis=-1)
        o = torch.einsum("bhqk,bhkd->bhqd", p, v)
        return (lambda x, *d: x.permute(*d))(o, 0, 2, 1, 3).reshape(B, S, D) @ wo

    def _B_ref(x, w1, b1, w2, b2):
        h = torch.einsum("bsd,df->bsf", x, w1) + b1
        h = _gelu(h)
        return torch.einsum("bsf,fd->bsd", h, w2) + b2

    x = A_x
    g = _sigmoid((x * gate_w).sum(-1, keepdims=True))
    a = _A_ref(x, A_wqkv, A_wo)
    b = _B_ref(x, B_w1, B_b1, B_w2, B_b2)
    return g * a + (1 - g) * b
```

```python
import struct, math, sys

NAME = "gated_mix__softmax_full_mha__dense_activation_gelu__prompt"
MB = 1 << 20
QF, KF, VF, HF, W2F, WOF, OF, GG, F2 = 0, 2 * MB, 4 * MB, 6 * MB, 14 * MB, 16 * MB, 17 * MB, 19 * MB, 20 * MB
WS_BYTES = 24 * MB
LOG2E = 1.4426950408889634


def f32bits(x):
    return struct.unpack("<I", struct.pack("<f", x))[0]


class Asm:
    def __init__(self):
        self.L = []

    def __call__(self, s):
        for line in s.strip("\n").split("\n"):
            self.L.append("    " + line.strip())

    def label(self, l):
        self.L.append(l + ":")

    def raw(self, s):
        self.L.append(s)

    def text(self):
        return "\n".join(self.L) + "\n"


def vr(b, n=1, f="v"):
    return f"{f}{b}" if n == 1 else f"{f}[{b}:{b + n - 1}]"


def ar(b, n=1):
    return vr(b, n, "a")


def srd(a, d, lo, nbytes):
    a(f"s_mov_b32 s{d}, s{lo}")
    a(f"s_mov_b32 s{d + 1}, s{lo + 1}")
    a(f"s_mov_b32 s{d + 2}, {nbytes:#x}")
    a(f"s_mov_b32 s{d + 3}, 0x00020000")


def kernel_head(a, name):
    a.raw(f".globl {name}")
    a.raw(".p2align 8")
    a.raw(f".type {name},@function")
    a.label(name)


def kernel_desc(name, nv, acc, ns=102):
    return f""".section .rodata,"a"
.p2align 6
.amdhsa_kernel {name}
  .amdhsa_next_free_vgpr {nv}
  .amdhsa_next_free_sgpr {ns}
  .amdhsa_accum_offset {acc}
  .amdhsa_group_segment_fixed_size 0
  .amdhsa_kernarg_size 96
  .amdhsa_user_sgpr_count 2
  .amdhsa_user_sgpr_kernarg_segment_ptr 1
  .amdhsa_system_sgpr_workgroup_id_x 1
.end_amdhsa_kernel
"""


def gen_k1(a):
    kernel_head(a, "k1_kernel")
    SX, SWQ, SW1, SB1, SGT, SWS, SWP, SWO = 24, 28, 32, 36, 40, 44, 48, 52
    sCQ, sRB, sW, sC0, sXB, sWB, sW1B, sLW4, sLW1, sT0, sT1, sT2, sST = 56, 57, 58, 59, 60, 61, 62, 63, 64, 65, 66, 67, 68
    sEXM = 70
    sSC = 72
    sCH = 76
    vL, vXE, vXO, vWS_, vW1S, vWPS, vT0, vT1, vT2, vTP = 1, 2, 3, 4, 5, 6, 7, 8, 9, 10
    vXR = 11
    vStN, vStV, vL16, vGA, vTmp = 15, 16, 17, 18, 19
    vGV = 24
    vWF = 32
    vAQ = 96
    vAF = 144
    vB = 208
    vPK = 236

    a("s_cmp_ge_u32 s2, 256")
    a("s_cbranch_scc1 K1_end")
    a("s_load_dwordx4 s[4:7], s[0:1], 0")
    a("s_load_dwordx2 s[8:9], s[0:1], 16")
    a("s_load_dwordx4 s[12:15], s[0:1], 32")
    a("s_load_dwordx2 s[16:17], s[0:1], 48")
    a("s_load_dwordx2 s[18:19], s[0:1], 64")
    a("s_load_dwordx2 s[20:21], s[0:1], 88")
    a(f"v_lshrrev_b32 v{vTmp}, 6, v0")
    a(f"v_and_b32 v{vL}, 63, v0")
    a(f"v_readfirstlane_b32 s{sW}, v{vTmp}")
    a(f"""
    s_and_b32 s{sT0}, s2, 7
    s_lshr_b32 s{sT1}, s2, 3
    s_and_b32 s{sCQ}, s{sT0}, 3
    s_lshl_b32 s{sCQ}, s{sCQ}, 2
    s_and_b32 s{sT2}, s{sT1}, 3
    s_add_u32 s{sCQ}, s{sCQ}, s{sT2}
    s_lshr_b32 s{sRB}, s{sT0}, 2
    s_lshl_b32 s{sRB}, s{sRB}, 3
    s_lshr_b32 s{sT1}, s{sT1}, 2
    s_add_u32 s{sRB}, s{sRB}, s{sT1}
    s_lshl_b32 s{sT2}, s{sT2}, 1
    s_add_u32 s{sC0}, s{sT1}, s{sT2}
    """)
    for t in range(8):
        a(f"s_add_u32 s{sCH + t}, s{sC0}, {t}")
        a(f"s_and_b32 s{sCH + t}, s{sCH + t}, 7")
    T = vTmp
    a(f"""
    v_lshrrev_b32 v{T}, 3, v{vL}
    v_lshlrev_b32 v{vXE}, 10, v{T}
    v_and_b32 v{T}, 7, v{vL}
    v_lshrrev_b32 v{T + 1}, 4, v{vL}
    v_xor_b32 v{T}, v{T}, v{T + 1}
    v_lshl_add_u32 v{vXE}, v{T}, 4, v{vXE}
    v_xor_b32 v{vXO}, 64, v{vXE}
    v_lshrrev_b32 v{T}, 2, v{vL}
    v_and_b32 v{T + 1}, 3, v{vL}
    v_lshlrev_b32 v{T + 1}, 4, v{T + 1}
    v_mul_u32_u24 v{vWS_}, 3072, v{T}
    v_add_u32 v{vWS_}, v{vWS_}, v{T + 1}
    v_mul_u32_u24 v{vW1S}, 3584, v{T}
    v_add_u32 v{vW1S}, v{vW1S}, v{T + 1}
    v_lshl_add_u32 v{vWPS}, v{T}, 10, v{T + 1}
    v_lshlrev_b32 v{vL16}, 4, v{vL}
    """)
    a("s_waitcnt lgkmcnt(0)")
    srd(a, SX, 4, 2 * MB)
    srd(a, SWQ, 6, 512 * 3072)
    a(f"""
    s_lshl_b32 s{sXB}, s{sRB}, 17
    s_lshl_b32 s{sT0}, s{sW}, 15
    s_add_u32 s{sXB}, s{sXB}, s{sT0}
    s_mul_i32 s{sWB}, s{sW}, {16 * 3072}
    s_mul_i32 s{sT0}, s{sCQ}, 192
    s_add_u32 s{sWB}, s{sWB}, s{sT0}
    s_lshl_b32 s{sLW4}, s{sW}, 12
    s_lshl_b32 s{sLW1}, s{sW}, 10
    """)

    vm = []

    def issue_x(t):
        slot = (t % 4) * 16384
        a(f"s_lshl_b32 s{sT0}, s{sCH + t}, 7")
        a(f"s_add_u32 s{sT0}, s{sT0}, s{sXB}")
        for q in range(4):
            a(f"s_add_u32 m0, s{sLW4}, {slot + q * 1024}")
            a(f"s_add_u32 s{sT1}, s{sT0}, {q * 8192}")
            a(f"buffer_load_dwordx4 v{vXE if q % 2 == 0 else vXO}, s[{SX}:{SX + 3}], s{sT1} offen lds")
            vm.append(("item", t))

    def issue_wq(t):
        base = 65536 + t * 12288
        a(f"s_mul_i32 s{sT0}, s{sCH + t}, {64 * 3072}")
        a(f"s_add_u32 s{sT0}, s{sT0}, s{sWB}")
        for tile in range(3):
            a(f"s_add_u32 m0, s{sLW1}, {base + tile * 4096}")
            a(f"s_add_u32 s{sT1}, s{sT0}, {tile * 64}")
            a(f"buffer_load_dwordx4 v{vWS_}, s[{SWQ}:{SWQ + 3}], s{sT1} offen lds")
            vm.append(("item", t))

    def f1_base(u):
        return 65536 + u * 16384 if u < 6 else (u - 6) * 16384

    def issue_w1(u):
        base = f1_base(u)
        a(f"s_mul_i32 s{sT0}, s{sCH + u}, {64 * 3584}")
        a(f"s_add_u32 s{sT0}, s{sT0}, s{sW1B}")
        for tile in range(4):
            a(f"s_add_u32 m0, s{sLW1}, {base + tile * 4096}")
            a(f"s_add_u32 s{sT1}, s{sT0}, {tile * 64}")
            if tile == 3:
                a(f"s_mov_b64 exec, s[{sEXM}:{sEXM + 1}]")
            a(f"buffer_load_dwordx4 v{vW1S}, s[{SW1}:{SW1 + 3}], s{sT1} offen lds")
            vm.append(("item", 8 + u))
        a("s_mov_b32 exec_lo, -1")
        a("s_mov_b32 exec_hi, 0")
        b = base + 3 * 4096
        if b >= 65536:
            a(f"v_add_u32 v{vTmp}, {b - (b & 0xffff)}, v{vGA}")
            a(f"ds_write_b16 v{vTmp}, v{vGV + u} offset:{b & 0xffff}")
        else:
            a(f"ds_write_b16 v{vGA}, v{vGV + u} offset:{b}")
        a("s_mov_b64 exec, -1")

    def wait_item(t):
        last = max(i for i, tg in enumerate(vm) if tg == ("item", t))
        n = len(vm) - 1 - last
        a(f"s_waitcnt vmcnt({n})")

    issue_x(0)
    issue_wq(0)
    issue_x(1)
    srd(a, SW1, 12, 512 * 3584)
    srd(a, SB1, 14, 3584)
    srd(a, SGT, 18, 1024)
    srd(a, SWS, 20, WS_BYTES)
    srd(a, SWO, 8, 512 * 1024)
    a(f"""
    s_mul_i32 s{sW1B}, s{sW}, {16 * 3584}
    s_mul_i32 s{sT0}, s{sCQ}, 224
    s_add_u32 s{sW1B}, s{sW1B}, s{sT0}
    s_mov_b32 s{sEXM}, 0x33333333
    s_mov_b32 s{sEXM + 1}, 0x33333333
    s_lshl_b32 s{sST}, s{sRB}, 2
    s_add_u32 s{sST}, s{sST}, s{sW}
    """)
    a(f"v_lshrrev_b32 v{T}, 5, v{vL}")
    a(f"v_lshlrev_b32 v{T + 2}, 3, v{T}")
    for k in range(14):
        a(f"buffer_load_dwordx2 {vr(vB + 2 * k, 2)}, v{T + 2}, s[{SB1}:{SB1 + 3}], s{sT0} offen offset:{16 * k}")
        vm.append(("small", 0))
    a(f"v_and_b32 v{T + 3}, 15, v{vL}")
    a(f"v_lshlrev_b32 v{T + 3}, 1, v{T + 3}")
    a(f"s_lshl_b32 s{sT2}, s{sW}, 5")
    for u in range(8):
        a(f"s_lshl_b32 s{sT1}, s{sCH + u}, 7")
        a(f"s_add_u32 s{sT1}, s{sT1}, s{sT2}")
        a(f"buffer_load_ushort v{vGV + u}, v{T + 3}, s[{SGT}:{SGT + 3}], s{sT1} offen")
        vm.append(("small", 0))
    issue_wq(1)
    a(f"""
    v_and_b32 v{T + 1}, 31, v{vL}
    v_bfe_u32 v{T + 2}, v{vL}, 1, 3
    v_xor_b32 v{T + 2}, v{T + 2}, v{T}
    v_lshlrev_b32 v{T + 2}, 4, v{T + 2}
    v_lshl_add_u32 v{vXR}, v{T + 1}, 7, v{T + 2}
    v_add_u32 v{vXR}, s{sLW4}, v{vXR}
    v_xor_b32 v{vXR + 1}, 32, v{vXR}
    v_xor_b32 v{vXR + 2}, 64, v{vXR}
    v_xor_b32 v{vXR + 3}, 96, v{vXR}
    """)
    a(f"""
    v_bfe_u32 v{T + 2}, v{vL}, 2, 2
    v_lshlrev_b32 v{T + 2}, 6, v{T + 2}
    v_bfe_u32 v{T + 3}, v{vL}, 4, 1
    v_lshl_add_u32 v{T + 2}, v{T + 3}, 5, v{T + 2}
    v_and_b32 v{T + 3}, 3, v{vL}
    v_lshl_add_u32 v{T + 2}, v{T + 3}, 3, v{T + 2}
    v_lshl_add_u32 v{vT0}, v{T}, 9, v{T + 2}
    v_lshl_add_u32 v{vTP}, v{T}, 8, v{T + 2}
    v_add_u32 v{vT1}, 0x10000, v{vT0}
    v_add_u32 v{vT2}, 0x20000, v{vT0}
    """)
    a(f"""
    v_and_b32 v{T + 2}, 0x33, v{vL}
    v_bfe_u32 v{T + 3}, v{vL}, 2, 1
    v_lshl_or_b32 v{T + 2}, v{T + 3}, 3, v{T + 2}
    v_bfe_u32 v{T + 3}, v{vL}, 3, 1
    v_lshl_or_b32 v{T + 2}, v{T + 3}, 2, v{T + 2}
    v_lshlrev_b32 v{vStN}, 4, v{T + 2}
    """)
    a(f"""
    v_and_b32 v{T + 2}, 15, v{vL}
    v_lshl_add_u32 v{T + 2}, v{T}, 4, v{T + 2}
    v_lshlrev_b32 v{T + 2}, 4, v{T + 2}
    v_bfe_u32 v{T + 3}, v{vL}, 4, 1
    v_lshl_add_u32 v{vStV}, v{T + 3}, 16, v{T + 2}
    """)
    a(f"""
    v_and_b32 v{T + 2}, 15, v{vL}
    v_lshlrev_b32 v{T + 2}, 6, v{T + 2}
    v_lshl_add_u32 v{T + 2}, v{T + 3}, 3, v{T + 2}
    v_add_u32 v{T + 2}, 32, v{T + 2}
    v_add_u32 v{vGA}, s{sLW1}, v{T + 2}
    """)
    cq_scale = f32bits(0.25 * LOG2E)
    a(f"s_mul_i32 s{sT0}, s{sCQ}, 3")
    for p in range(3):
        a(f"s_add_u32 s{sT1}, s{sT0}, {p}")
        a(f"s_cmp_lt_u32 s{sT1}, 16")
        a(f"s_cselect_b32 s{sSC + p}, {cq_scale:#x}, 1.0")

    def tr_addr(off):
        b = [vT0, vT1, vT2][off >> 16]
        return b, off & 0xffff

    def reads_ks(imgbase, ntiles, ks, xslot=None, xdst=None):
        n = 0
        if xslot is not None:
            a(f"ds_read_b128 {ar(xdst, 4)}, v{vXR + ks} offset:{xslot}")
            n += 1
        for tile in range(ntiles):
            for u in range(2):
                b, o = tr_addr(imgbase + tile * 4096 + ks * 1024 + u * 256)
                a(f"ds_read_b64_tr_b16 {vr(vWF + ks * 16 + tile * 4 + u * 2, 2)}, v{b} offset:{o}")
                n += 1
        return n

    def qkv_variant(var):
        nonlocal vm
        saved = list(vm)
        for t in range(8):
            nxt = t + 2
            if nxt < 8:
                issue_x(nxt)
                issue_wq(nxt)
            else:
                issue_w1(nxt - 8)
            wait_item(t)
            a("s_barrier")
            img = 65536 + t * 12288
            xs = (t % 4) * 16384

            def mf(ks):
                for p in range(3):
                    wf = vr(vWF + ks * 16 + p * 4, 4)
                    xf = ar(16 * t + 4 * ks, 4)
                    acc = vr(vAQ + 16 * p, 16)
                    c = "0" if (t == 0 and ks == 0) else acc
                    if var[p] == "N":
                        a(f"v_mfma_f32_32x32x16_bf16 {acc}, {wf}, {xf}, {c}")
                    else:
                        a(f"v_mfma_f32_32x32x16_bf16 {acc}, {xf}, {wf}, {c}")
            reads_ks(img, 3, 0, xs, 16 * t)
            reads_ks(img, 3, 1, xs, 16 * t + 4)
            a("s_waitcnt lgkmcnt(7)")
            mf(0)
            reads_ks(img, 3, 2, xs, 16 * t + 8)
            a("s_waitcnt lgkmcnt(7)")
            mf(1)
            reads_ks(img, 3, 3, xs, 16 * t + 12)
            a("s_waitcnt lgkmcnt(7)")
            mf(2)
            a("s_waitcnt lgkmcnt(0)")
            mf(3)
            if t == 2:
                for k in range(14):
                    d = vAF + 4 * k
                    a(f"v_lshlrev_b32 v{d}, 16, v{vB + 2 * k}")
                    a(f"v_and_b32 v{d + 1}, 0xffff0000, v{vB + 2 * k}")
                    a(f"v_lshlrev_b32 v{d + 2}, 16, v{vB + 2 * k + 1}")
                    a(f"v_and_b32 v{d + 3}, 0xffff0000, v{vB + 2 * k + 1}")
                for k in range(56, 64):
                    a(f"v_mov_b32 v{vAF + k}, 0")
        a(f"s_mul_i32 s{sT0}, s{sCQ}, {3 * 131072}")
        a(f"s_lshl_b32 s{sT1}, s{sST}, 10")
        a(f"s_add_u32 s{sT0}, s{sT0}, s{sT1}")
        a("s_nop 7")
        for p in range(3):
            acc = vAQ + 16 * p
            if p == 2:
                a("s_nop 3")
            if var[p] == "N":
                for r in range(16):
                    a(f"v_mul_f32 v{acc + r}, s{sSC + p}, v{acc + r}")
            d = vB + 8 * p
            for r in range(8):
                a(f"v_cvt_pk_bf16_f32 v{d + r}, v{acc + 2 * r}, v{acc + 2 * r + 1}")
            a(f"s_add_u32 s{sT1}, s{sT0}, {p * 131072}")
            if var[p] == "N":
                a(f"s_add_u32 s{sT2}, s{sT1}, 65536")
                a(f"buffer_store_dwordx4 {vr(d, 4)}, v{vStN}, s[{SWS}:{SWS + 3}], s{sT1} offen")
                a(f"buffer_store_dwordx4 {vr(d + 4, 4)}, v{vStN}, s[{SWS}:{SWS + 3}], s{sT2} offen")
            else:
                a(f"buffer_store_dwordx4 {vr(d, 4)}, v{vStV}, s[{SWS}:{SWS + 3}], s{sT1} offen")
                a(f"buffer_store_dwordx4 {vr(d + 4, 4)}, v{vStV}, s[{SWS}:{SWS + 3}], s{sT1} offen offset:512")
            vm.append(("st", 0))
            vm.append(("st", 0))
        res = list(vm)
        vm = saved
        return res

    a(f"s_cmp_lt_u32 s{sCQ}, 10")
    a("s_cbranch_scc1 K1_NNN")
    a(f"s_cmp_eq_u32 s{sCQ}, 10")
    a("s_cbranch_scc1 K1_NNV")
    qkv_variant("VVV")
    a("s_branch K1_ffn")
    a.label("K1_NNV")
    qkv_variant("NNV")
    a("s_branch K1_ffn")
    a.label("K1_NNN")
    vm = qkv_variant("NNN")
    a.label("K1_ffn")

    sU, sPB, sPD = 84, 85, 86
    a(f"""
    s_lshl_b32 s{sU}, s2, 3
    s_lshl_b32 s{sT0}, s{sW}, 1
    s_add_u32 s{sU}, s{sU}, s{sT0}
    s_mov_b32 s{sT1}, {512 * 1024:#x}
    s_mov_b32 s{sPD}, {WOF:#x}
    s_cmp_lt_u32 s{sU}, 1792
    s_cselect_b32 s{SWP}, s16, s8
    s_cselect_b32 s{SWP + 1}, s17, s9
    s_cselect_b32 s{SWP + 2}, {1792 * 1024:#x}, s{sT1}
    s_mov_b32 s{SWP + 3}, 0x00020000
    s_cselect_b32 s{sT0}, 0, 1792
    s_cselect_b32 s{sT2}, 112, 32
    s_cselect_b32 s{sPD}, {W2F:#x}, s{sPD}
    s_sub_u32 s{sU}, s{sU}, s{sT0}
    s_lshr_b32 s{sT0}, s{sU}, 4
    s_and_b32 s{sT1}, s{sU}, 15
    s_lshl_b32 s{sPB}, s{sT0}, 14
    s_lshl_b32 s{sU}, s{sT1}, 6
    s_add_u32 s{sPB}, s{sPB}, s{sU}
    s_mul_i32 s{sT1}, s{sT1}, s{sT2}
    s_add_u32 s{sT1}, s{sT1}, s{sT0}
    s_lshl_b32 s{sT1}, s{sT1}, 10
    s_add_u32 s{sPD}, s{sPD}, s{sT1}
    s_lshl_b32 s{sU}, s{sT2}, 10
    """)
    sP3, sD3 = 87, 88
    a(f"""
    s_lshr_b32 s{sT0}, s2, 4
    s_add_u32 s{sT0}, s{sT0}, 16
    s_and_b32 s{sT1}, s2, 15
    s_lshl_b32 s{sP3}, s{sT0}, 14
    s_lshl_b32 s{sT2}, s{sT1}, 6
    s_add_u32 s{sP3}, s{sP3}, s{sT2}
    s_lshl_b32 s{sT1}, s{sT1}, 5
    s_add_u32 s{sT1}, s{sT1}, s{sT0}
    s_lshl_b32 s{sT1}, s{sT1}, 10
    s_add_u32 s{sD3}, s{sT1}, {WOF:#x}
    """)
    PKL = 32768

    def issue_pack():
        a(f"s_add_u32 m0, s{sLW4}, {PKL}")
        a(f"s_add_u32 s{sT1}, s{sPB}, 64")
        a(f"buffer_load_dwordx4 v{vWPS}, s[{SWP}:{SWP + 3}], s{sPB} offen lds")
        a(f"s_add_u32 m0, s{sLW4}, {PKL + 1024}")
        a("s_nop 0")
        a(f"buffer_load_dwordx4 v{vWPS}, s[{SWP}:{SWP + 3}], s{sT1} offen lds")
        a(f"s_add_u32 m0, s{sLW4}, {PKL + 2048}")
        a("s_nop 0")
        a(f"buffer_load_dwordx4 v{vWPS}, s[{SWO}:{SWO + 3}], s{sP3} offen lds")
        for _ in range(3):
            vm.append(("pack", 0))

    for u in range(8):
        if u + 2 < 8:
            issue_w1(u + 2)
        if u == 0:
            issue_pack()
        wait_item(8 + u)
        a("s_waitcnt lgkmcnt(0)")
        a("s_barrier")
        img = f1_base(u)

        def mf(ks):
            for p in range(4):
                wf = vr(vWF + ks * 16 + p * 4, 4)
                xf = ar(16 * u + 4 * ks, 4)
                acc = vr(vAF + 16 * p, 16)
                a(f"v_mfma_f32_32x32x16_bf16 {acc}, {wf}, {xf}, {acc}")
        reads_ks(img, 4, 0)
        reads_ks(img, 4, 1)
        a("s_waitcnt lgkmcnt(8)")
        mf(0)
        reads_ks(img, 4, 2)
        a("s_waitcnt lgkmcnt(8)")
        mf(1)
        reads_ks(img, 4, 3)
        a("s_waitcnt lgkmcnt(8)")
        mf(2)
        a("s_waitcnt lgkmcnt(0)")
        mf(3)
        if u == 4:
            a(f"v_add_u32 v{vTmp}, s{sLW4}, v{vTP}")
            for k in range(3):
                for uu in range(2):
                    a(f"ds_read_b64_tr_b16 {vr(vPK + 4 * k + 2 * uu, 2)}, v{vTmp} offset:{PKL + k * 1024 + uu * 512}")
            a("s_waitcnt lgkmcnt(0)")
            a(f"s_add_u32 s{sT1}, s{sPD}, s{sU}")
            a(f"buffer_store_dwordx4 {vr(vPK, 4)}, v{vL16}, s[{SWS}:{SWS + 3}], s{sPD} offen")
            a(f"buffer_store_dwordx4 {vr(vPK + 4, 4)}, v{vL16}, s[{SWS}:{SWS + 3}], s{sT1} offen")
            a(f"buffer_store_dwordx4 {vr(vPK + 8, 4)}, v{vL16}, s[{SWS}:{SWS + 3}], s{sD3} offen")
            for _ in range(3):
                vm.append(("st", 0))
    c0 = -2.0 * LOG2E * math.sqrt(2.0 / math.pi)
    c1 = c0 * 0.044715
    vQ = vWF
    vC0 = vWF + 2
    vC1 = vWF + 4
    vG = vWF + 6
    a(f"v_mov_b32 v{vC0}, {f32bits(c0):#x}")
    a(f"v_mov_b32 v{vC0 + 1}, {f32bits(c0):#x}")
    a(f"v_mov_b32 v{vC1}, {f32bits(c1):#x}")
    a(f"v_mov_b32 v{vC1 + 1}, {f32bits(c1):#x}")
    a(f"s_mul_i32 s{sT0}, s{sST}, {112 * 1024}")
    a(f"s_mul_i32 s{sT1}, s{sCQ}, {7 * 1024}")
    a(f"s_add_u32 s{sT0}, s{sT0}, s{sT1}")
    a(f"s_add_u32 s{sT0}, s{sT0}, {HF:#x}")
    a(f"s_add_u32 s{sT1}, s{sT0}, 4096")
    a("s_nop 7")
    z = vAF + 56
    a(f"v_mul_f32 v{vG}, {f32bits(LOG2E):#x}, v{z}")
    a(f"v_exp_f32 v{vQ}, v{vG}")
    a(f"v_exp_f32 v{vG}, -v{vG}")
    a(f"v_add_f32 v{vQ}, 1.0, v{vQ}")
    a(f"v_add_f32 v{vG}, 1.0, v{vG}")
    a(f"v_min_f32 v{vQ}, {f32bits(2.0 ** 120):#x}, v{vQ}")
    a(f"v_rcp_f32 v{vG}, v{vG}")
    a(f"v_mov_b32 v{vQ + 1}, v{vQ}")
    a(f"s_cmp_lg_u32 s{sCQ}, 0")
    a("s_cbranch_scc1 K1_nog")
    a(f"v_lshlrev_b32 v{vTmp}, 2, v{vL}")
    a(f"s_lshl_b32 s{sT2}, s{sST}, 7")
    a(f"s_add_u32 s{sT2}, s{sT2}, {GG:#x}")
    a("s_mov_b32 exec_hi, 0")
    a(f"buffer_store_dword v{vG}, v{vTmp}, s[{SWS}:{SWS + 3}], s{sT2} offen")
    a("s_mov_b64 exec, -1")
    a.label("K1_nog")
    tmp = vWF + 8
    for k in range(7):
        h = vAF + 8 * k
        t = tmp + (k % 2) * 16
        for i in range(4):
            a(f"v_pk_mul_f32 {vr(t + 2 * i, 2)}, {vr(h + 2 * i, 2)}, {vr(h + 2 * i, 2)}")
        for i in range(4):
            a(f"v_pk_fma_f32 {vr(t + 2 * i, 2)}, {vr(t + 2 * i, 2)}, {vr(vC1, 2)}, {vr(vC0, 2)}")
        for i in range(4):
            a(f"v_pk_mul_f32 {vr(t + 2 * i, 2)}, {vr(t + 2 * i, 2)}, {vr(h + 2 * i, 2)}")
        for i in range(8):
            a(f"v_exp_f32 v{t + i}, v{t + i}")
        for i in range(4):
            a(f"v_pk_fma_f32 {vr(t + 2 * i, 2)}, {vr(t + 2 * i, 2)}, {vr(vQ, 2)}, {vr(vQ, 2)}")
        for i in range(8):
            a(f"v_rcp_f32 v{t + i}, v{t + i}")
        for i in range(4):
            a(f"v_pk_mul_f32 {vr(t + 2 * i, 2)}, {vr(t + 2 * i, 2)}, {vr(h + 2 * i, 2)}")
        for i in range(4):
            a(f"v_cvt_pk_bf16_f32 v{t + 8 + i}, v{t + 2 * i}, v{t + 2 * i + 1}")
        so = sT0 if k < 4 else sT1
        a(f"buffer_store_dwordx4 {vr(t + 8, 4)}, v{vL16}, s[{SWS}:{SWS + 3}], s{so} offen offset:{(k % 4) * 1024}")
    a.label("K1_end")
    a("s_endpgm")


def gen_k2(a):
    kernel_head(a, "k2_kernel")
    SWS = 8
    sW, sHead, sQB, sT0, sT1, sT2, sKB, sLW2, sQT, sFR, sFC = 12, 13, 14, 15, 16, 17, 18, 19, 20, 21, 22
    sH0, sH1, sN0, sN1, sCnt = 23, 24, 25, 26, 27
    sVM = 28
    sKD = 30
    sLD = 31
    vL, vL16, vKA, vVA, vIdx, vTmp = 1, 2, 3, 4, 5, 6
    vQ = 16
    vK = 24
    vV = 32
    vS = 48
    vM = 80
    vO = 112
    vF = 144
    vGq = 208
    aR = 0

    a("s_cmp_ge_u32 s2, 256")
    a("s_cbranch_scc1 K2_end")
    a("s_load_dwordx2 s[4:5], s[0:1], 88")
    a(f"v_lshrrev_b32 v{vTmp}, 6, v0")
    a(f"v_and_b32 v{vL}, 63, v0")
    a(f"v_readfirstlane_b32 s{sW}, v{vTmp}")
    a(f"v_lshlrev_b32 v{vL16}, 4, v{vL}")
    a(f"""
    s_and_b32 s{sT0}, s2, 7
    s_lshr_b32 s{sT1}, s2, 3
    s_lshl_b32 s{sHead}, s{sT0}, 2
    s_and_b32 s{sT2}, s{sT1}, 3
    s_add_u32 s{sHead}, s{sHead}, s{sT2}
    s_lshr_b32 s{sQB}, s{sT1}, 2
    s_mov_b32 s{sFR}, s{sHead}
    s_mov_b32 s{sFC}, s{sQB}
    s_lshl_b32 s{sKB}, s{sHead}, 16
    s_lshl_b32 s{sLW2}, s{sW}, 11
    s_lshl_b32 s{sQT}, s{sQB}, 3
    s_lshl_b32 s{sT0}, s{sW}, 1
    s_add_u32 s{sQT}, s{sQT}, s{sT0}
    s_add_u32 s{sKD}, s{sKB}, s{sLW2}
    s_add_u32 s{sKD}, s{sKD}, {KF:#x}
    s_mov_b32 s{sLD}, s{sLW2}
    s_mov_b32 s{sVM}, 0x0000ffff
    s_mov_b32 s{sVM + 1}, 0x0000ffff
    """)
    T = vTmp
    a(f"""
    v_and_b32 v{T + 2}, 0x33, v{vL}
    v_bfe_u32 v{T + 3}, v{vL}, 2, 1
    v_lshl_or_b32 v{T + 2}, v{T + 3}, 3, v{T + 2}
    v_bfe_u32 v{T + 3}, v{vL}, 3, 1
    v_lshl_or_b32 v{T + 2}, v{T + 3}, 2, v{T + 2}
    v_lshlrev_b32 v{T + 2}, 4, v{T + 2}
    v_and_b32 v{T + 4}, 31, v{vL}
    v_lshlrev_b32 v{T + 4}, 2, v{T + 4}
    """)
    a("s_waitcnt lgkmcnt(0)")
    srd(a, SWS, 4, WS_BYTES)
    vm = []

    def dma_chunk():
        a(f"s_mov_b32 m0, s{sLD}")
        a(f"s_add_u32 s{sT0}, s{sKD}, {VF - KF:#x}")
        a(f"buffer_load_dwordx4 v{vL16}, s[{SWS}:{SWS + 3}], s{sKD} offen lds")
        a(f"buffer_load_dwordx4 v{vL16}, s[{SWS}:{SWS + 3}], s{sKD} offen offset:1024 lds")
        a(f"s_add_u32 m0, s{sLD}, 65536")
        a(f"s_add_u32 s{sKD}, s{sKD}, 8192")
        a(f"buffer_load_dwordx4 v{vL16}, s[{SWS}:{SWS + 3}], s{sT0} offen lds")
        a(f"buffer_load_dwordx4 v{vL16}, s[{SWS}:{SWS + 3}], s{sT0} offen offset:1024 lds")
        a(f"s_add_u32 s{sLD}, s{sLD}, 8192")

    a(f"s_lshl_b32 s{sT1}, s{sQT}, 10")
    a(f"s_add_u32 s{sT1}, s{sT1}, s{sKB}")
    a(f"buffer_load_dwordx4 {vr(vQ, 4)}, v{T + 2}, s[{SWS}:{SWS + 3}], s{sT1} offen")
    a(f"buffer_load_dwordx4 {vr(vQ + 4, 4)}, v{T + 2}, s[{SWS}:{SWS + 3}], s{sT1} offen offset:1024")
    dma_chunk()
    a(f"s_lshl_b32 s{sT1}, s{sQT}, 7")
    a(f"s_add_u32 s{sT1}, s{sT1}, {GG:#x}")
    a(f"buffer_load_dword v{vGq}, v{T + 4}, s[{SWS}:{SWS + 3}], s{sT1} offen")
    a(f"buffer_load_dword v{vGq + 1}, v{T + 4}, s[{SWS}:{SWS + 3}], s{sT1} offen offset:128")
    dma_chunk()
    a(f"""
    s_mul_i32 s{sT0}, s{sW}, {28 * 1024}
    s_mul_i32 s{sH0}, s{sFR}, {2 * 112 * 1024}
    s_add_u32 s{sH0}, s{sH0}, s{sT0}
    s_add_u32 s{sH0}, s{sH0}, {HF:#x}
    s_add_u32 s{sH1}, s{sH0}, {112 * 1024}
    s_mul_i32 s{sN0}, s{sFC}, {2 * 112 * 1024}
    s_add_u32 s{sN0}, s{sN0}, s{sT0}
    s_add_u32 s{sN0}, s{sN0}, {W2F:#x}
    s_add_u32 s{sN1}, s{sN0}, {112 * 1024}
    """)
    a(f"v_mov_b32 v{vKA}, v{vL16}")
    a(f"""
    v_and_b32 v{T}, 15, v{vL}
    v_lshrrev_b32 v{T + 1}, 5, v{vL}
    v_lshl_add_u32 v{T}, v{T + 1}, 4, v{T}
    v_lshlrev_b32 v{T}, 4, v{T}
    v_add_u32 v{vVA}, 0x10000, v{T}
    v_mov_b32 v{vIdx}, 0xdddddddd
    """)
    for r in range(16):
        a(f"v_mov_b32 v{vV + r}, 0x3f803f80")
    for r in range(32):
        a(f"v_mov_b32 v{vO + r}, 0")
    for r in range(64):
        a(f"v_mov_b32 v{vF + r}, 0")
    a("s_waitcnt vmcnt(6)")
    a("s_barrier")
    a(f"ds_read_b128 {vr(vK, 4)}, v{vKA}")
    a(f"ds_read_b128 {vr(vK + 4, 4)}, v{vKA} offset:1024")
    a(f"s_mov_b64 exec, s[{sVM}:{sVM + 1}]")
    a(f"ds_read_b128 {vr(vV, 4)}, v{vVA}")
    a(f"ds_read_b128 {vr(vV + 4, 4)}, v{vVA} offset:512")
    a("s_mov_b64 exec, -1")
    a("s_waitcnt lgkmcnt(3)")
    SA, SB = vS, vS + 16
    a(f"v_mfma_f32_32x32x16_bf16 {vr(SA, 16)}, {vr(vK, 4)}, {vr(vQ, 4)}, 0")
    a(f"v_mfma_f32_32x32x16_bf16 {vr(SB, 16)}, {vr(vK, 4)}, {vr(vQ + 4, 4)}, 0")
    a("s_nop 15")
    for X, (S, M) in enumerate(((SA, vM), (SB, vM + 16))):
        t = T + 4 * X
        a(f"v_max3_f32 v{t}, v{S}, v{S + 1}, v{S + 2}")
        for r in range(3, 15, 2):
            a(f"v_max3_f32 v{t}, v{t}, v{S + r}, v{S + r + 1}")
        a(f"v_max_f32 v{t}, v{t}, v{S + 15}")
        a(f"v_mov_b32 v{t + 1}, v{t}")
        a("s_nop 1")
        a(f"v_permlane32_swap_b32 v{t}, v{t + 1}")
        a("s_nop 1")
        a(f"v_max_f32 v{t}, v{t}, v{t + 1}")
        a(f"v_sub_f32 v{M}, 0, v{t}")
        for r in range(1, 16):
            a(f"v_mov_b32 v{M + r}, v{M}")
    a("s_nop 1")
    a(f"v_mfma_f32_32x32x16_bf16 {vr(SA, 16)}, {vr(vK, 4)}, {vr(vQ, 4)}, {vr(vM, 16)}")
    for r in range(8, 16):
        a(f"v_mov_b32 v{SB + r}, 0")
    a("s_nop 7")

    OA, OB = vO, vO + 16

    def exps(S, lo, hi):
        for r in range(lo, hi):
            a(f"v_exp_f32 v{S + r}, v{S + r}")

    def super_iter(ffn_mfma, ffn_load, dma, last):
        for tt in range(8):
            kb_cur = vK + 4 * (tt % 2)
            kb_nxt = vK + 4 * ((tt + 1) % 2)
            vb_cur = vV + 8 * (tt % 2)
            vb_oth = vV + 8 * ((tt + 1) % 2)
            ks = tt // 2
            ring = aR + 16 * ks
            fin = last and tt == 7
            if tt == 0 and dma:
                dma_chunk()
            if tt == 6 and not last:
                a(f"s_waitcnt vmcnt({SYNC_N[(ffn_mfma, ffn_load, dma)]})")
                a("s_barrier")
            exps(SA, 0, 4)
            a(f"v_smfmac_f32_32x32x32_bf16 {vr(OB, 16)}, {vr(vb_oth + 4, 4)}, {vr(SB + 8, 8)}, v{vIdx}")
            exps(SA, 4, 8)
            a(f"v_mfma_f32_32x32x16_bf16 {vr(SB, 16)}, {vr(kb_cur, 4)}, {vr(vQ + 4, 4)}, {vr(vM + 16, 16)}")
            nrd = 0
            if not fin:
                a(f"s_mov_b64 exec, s[{sVM}:{sVM + 1}]")
                a(f"ds_read_b128 {vr(vb_oth, 4)}, v{vVA} offset:{(tt + 1) * 1024}")
                a(f"ds_read_b128 {vr(vb_oth + 4, 4)}, v{vVA} offset:{(tt + 1) * 1024 + 512}")
                a("s_mov_b64 exec, -1")
                nrd = 2
                if not (last and tt == 6):
                    a(f"ds_read_b128 {vr(kb_cur, 4)}, v{vKA} offset:{(tt + 2) * 1024}")
                    nrd = 3
            exps(SA, 8, 12)
            a(f"s_waitcnt lgkmcnt({nrd})")
            a(f"v_smfmac_f32_32x32x32_bf16 {vr(OA, 16)}, {vr(vb_cur, 4)}, {vr(SA, 8)}, v{vIdx}")
            exps(SA, 12, 16)
            if ffn_mfma:
                if tt % 2 == 0:
                    a(f"s_waitcnt vmcnt({RING_N[(ffn_load, dma, ks)]})")
                st = tt % 2
                a(f"v_mfma_f32_32x32x16_bf16 {vr(vF + 16 * (2 * st), 16)}, {ar(ring, 4)}, {ar(ring + 8 + 4 * st, 4)}, {vr(vF + 16 * (2 * st), 16)}")
            exps(SB, 0, 4)
            a(f"v_smfmac_f32_32x32x32_bf16 {vr(OA, 16)}, {vr(vb_cur + 4, 4)}, {vr(SA + 8, 8)}, v{vIdx}")
            exps(SB, 4, 8)
            if not fin:
                a(f"v_mfma_f32_32x32x16_bf16 {vr(SA, 16)}, {vr(kb_nxt, 4)}, {vr(vQ, 4)}, {vr(vM, 16)}")
            exps(SB, 8, 12)
            a(f"v_smfmac_f32_32x32x32_bf16 {vr(OB, 16)}, {vr(vb_cur, 4)}, {vr(SB, 8)}, v{vIdx}")
            exps(SB, 12, 16)
            if ffn_mfma:
                st = tt % 2
                a(f"v_mfma_f32_32x32x16_bf16 {vr(vF + 16 * (2 * st + 1), 16)}, {ar(ring + 4, 4)}, {ar(ring + 8 + 4 * st, 4)}, {vr(vF + 16 * (2 * st + 1), 16)}")
            if ffn_load and tt % 2 == 1:
                off = ks * 1024
                a(f"buffer_load_dwordx4 {ar(ring, 4)}, v{vL16}, s[{SWS}:{SWS + 3}], s{sN0} offen offset:{off}")
                a(f"buffer_load_dwordx4 {ar(ring + 4, 4)}, v{vL16}, s[{SWS}:{SWS + 3}], s{sN1} offen offset:{off}")
                a(f"buffer_load_dwordx4 {ar(ring + 8, 4)}, v{vL16}, s[{SWS}:{SWS + 3}], s{sH0} offen offset:{off}")
                a(f"buffer_load_dwordx4 {ar(ring + 12, 4)}, v{vL16}, s[{SWS}:{SWS + 3}], s{sH1} offen offset:{off}")
        if ffn_load:
            for s in (sN0, sN1, sH0, sH1):
                a(f"s_add_u32 s{s}, s{s}, 4096")
        if not last:
            a(f"v_add_u32 v{vKA}, 8192, v{vKA}")
            a(f"v_add_u32 v{vVA}, 8192, v{vVA}")

    global SYNC_N, RING_N
    SYNC_N = {
        (False, True, True): 4 + 12,
        (True, True, True): 32,
        (True, True, False): 28,
    }
    RING_N = {}
    for fl in (True, False):
        for dm in (True, False):
            for ks in range(4):
                RING_N[(fl, dm, ks)] = 4 * (3 - ks) + (4 if dm else 0) + (4 * ks if fl else 0)

    super_iter(False, True, True, False)
    a(f"s_mov_b32 s{sCnt}, 5")
    a.raw(".p2align 6")
    a.label("K2_loop")
    super_iter(True, True, True, False)
    a(f"s_sub_u32 s{sCnt}, s{sCnt}, 1")
    a(f"s_cmp_lg_u32 s{sCnt}, 0")
    a("s_cbranch_scc1 K2_loop")
    super_iter(True, True, False, False)
    super_iter(True, False, False, True)
    a("s_nop 1")
    a(f"v_smfmac_f32_32x32x32_bf16 {vr(OB, 16)}, {vr(vV + 8 + 4, 4)}, {vr(SB + 8, 8)}, v{vIdx}")
    a(f"s_lshl_b32 s{sT0}, s{sQT}, 15")
    a(f"s_lshl_b32 s{sT1}, s{sHead}, 10")
    a(f"s_add_u32 s{sT0}, s{sT0}, s{sT1}")
    a(f"s_add_u32 s{sT0}, s{sT0}, {OF:#x}")
    a(f"s_add_u32 s{sT1}, s{sT0}, 32768")
    for X, O in enumerate((OA, OB)):
        if X == 1:
            a("s_nop 7")
        t = T + 4 * X
        a(f"v_rcp_f32 v{t}, v{O + 8}")
        a("s_nop 0")
        a(f"v_mul_f32 v{t}, v{t}, v{vGq + X}")
        for r in range(8):
            a(f"v_mul_f32 v{O + r}, v{O + r}, v{t}")
        for r in range(4):
            a(f"v_cvt_pk_bf16_f32 v{O + 12 + r}, v{O + 2 * r}, v{O + 2 * r + 1}")
        a(f"buffer_store_dwordx4 {vr(O + 12, 4)}, v{vL16}, s[{SWS}:{SWS + 3}], s{sT0 if X == 0 else sT1} offen")
    a("s_barrier")
    a(f"s_lshl_b32 s{sT0}, s{sW}, 12")
    a(f"v_add_u32 v{T}, s{sT0}, v{vL16}")
    for i in range(4):
        for q in range(4):
            a(f"ds_write_b128 v{T}, {vr(vF + 16 * i + 4 * q, 4)} offset:{i * 16384 + q * 1024}")
    a("s_waitcnt lgkmcnt(0)")
    a("s_barrier")
    a(f"s_lshl_b32 s{sT0}, s{sW}, 14")
    a(f"v_add_u32 v{T}, s{sT0}, v{vL16}")
    for w in range(4):
        for q in range(4):
            a(f"ds_read_b128 {vr(vF + 16 * w + 4 * q, 4)}, v{T} offset:{w * 4096 + q * 1024}")
    a(f"s_lshl_b32 s{sT0}, s2, 14")
    a(f"s_lshl_b32 s{sT1}, s{sW}, 12")
    a(f"s_add_u32 s{sT0}, s{sT0}, s{sT1}")
    a(f"s_add_u32 s{sT0}, s{sT0}, {F2:#x}")
    a("s_waitcnt lgkmcnt(0)")
    for r in range(0, 16, 2):
        a(f"v_pk_add_f32 {vr(vF + r, 2)}, {vr(vF + r, 2)}, {vr(vF + 16 + r, 2)}")
        a(f"v_pk_add_f32 {vr(vF + 32 + r, 2)}, {vr(vF + 32 + r, 2)}, {vr(vF + 48 + r, 2)}")
    for r in range(0, 16, 2):
        a(f"v_pk_add_f32 {vr(vF + r, 2)}, {vr(vF + r, 2)}, {vr(vF + 32 + r, 2)}")
    for q in range(4):
        a(f"buffer_store_dwordx4 {vr(vF + 4 * q, 4)}, v{vL16}, s[{SWS}:{SWS + 3}], s{sT0} offen offset:{q * 1024}")
    a.label("K2_end")
    a("s_endpgm")


def gen_k3(a):
    kernel_head(a, "k3_kernel")
    SWS, SB2, SO = 8, 12, 16
    sW, sFR, sFC, sT0, sT1, sT2, sST, sNT, sA, sB = 20, 21, 22, 23, 24, 25, 26, 27, 28, 29
    vL, vL16, vTmp, vG = 1, 2, 3, 8
    vAcc = 16
    vB2 = 32
    vA = 64
    a("s_cmp_ge_u32 s2, 256")
    a("s_cbranch_scc1 K3_end")
    a("s_load_dwordx2 s[4:5], s[0:1], 88")
    a("s_load_dwordx2 s[6:7], s[0:1], 56")
    a("s_load_dwordx2 s[30:31], s[0:1], 72")
    a(f"v_lshrrev_b32 v{vTmp}, 6, v0")
    a(f"v_and_b32 v{vL}, 63, v0")
    a(f"v_readfirstlane_b32 s{sW}, v{vTmp}")
    a(f"v_lshlrev_b32 v{vL16}, 4, v{vL}")
    a(f"""
    s_and_b32 s{sT0}, s2, 7
    s_lshr_b32 s{sT1}, s2, 3
    s_lshl_b32 s{sFR}, s{sT0}, 2
    s_and_b32 s{sT2}, s{sT1}, 3
    s_add_u32 s{sFR}, s{sFR}, s{sT2}
    s_lshr_b32 s{sFC}, s{sT1}, 2
    s_lshl_b32 s{sST}, s{sFR}, 1
    s_lshr_b32 s{sT0}, s{sW}, 1
    s_add_u32 s{sST}, s{sST}, s{sT0}
    s_lshl_b32 s{sNT}, s{sFC}, 1
    s_and_b32 s{sT0}, s{sW}, 1
    s_add_u32 s{sNT}, s{sNT}, s{sT0}
    s_lshl_b32 s{sA}, s{sNT}, 15
    s_add_u32 s{sA}, s{sA}, {WOF:#x}
    s_lshl_b32 s{sB}, s{sST}, 15
    s_add_u32 s{sB}, s{sB}, {OF:#x}
    """)
    T = vTmp
    a(f"v_and_b32 v{T}, 31, v{vL}")
    a(f"v_lshlrev_b32 v{T + 1}, 2, v{T}")
    a(f"v_lshrrev_b32 v{T + 2}, 5, v{vL}")
    a(f"v_lshlrev_b32 v{T + 3}, 3, v{T + 2}")
    a(f"v_lshlrev_b32 v{T + 4}, 10, v{T}")
    a(f"v_lshl_add_u32 v{T + 4}, v{T + 2}, 4, v{T + 4}")
    a("s_waitcnt lgkmcnt(0)")
    srd(a, SWS, 4, WS_BYTES)
    srd(a, SB2, 6, 1024)
    srd(a, SO, 30, 2 * MB)
    a(f"s_lshl_b32 s{sT0}, s2, 14")
    a(f"s_lshl_b32 s{sT1}, s{sW}, 12")
    a(f"s_add_u32 s{sT0}, s{sT0}, s{sT1}")
    a(f"s_add_u32 s{sT0}, s{sT0}, {F2:#x}")
    for q in range(4):
        a(f"buffer_load_dwordx4 {vr(vAcc + 4 * q, 4)}, v{vL16}, s[{SWS}:{SWS + 3}], s{sT0} offen offset:{q * 1024}")
    a(f"s_lshl_b32 s{sT1}, s{sST}, 7")
    a(f"s_add_u32 s{sT1}, s{sT1}, {GG:#x}")
    a(f"buffer_load_dword v{vG}, v{T + 1}, s[{SWS}:{SWS + 3}], s{sT1} offen")
    a(f"s_lshl_b32 s{sT1}, s{sNT}, 6")
    for g in range(4):
        a(f"buffer_load_dwordx2 {vr(vB2 + 2 * g, 2)}, v{T + 3}, s[{SB2}:{SB2 + 3}], s{sT1} offen offset:{16 * g}")
    DEPTH = 24

    def ld(ks):
        if ks % 4 == 0 and ks > 0:
            a(f"s_add_u32 s{sA}, s{sA}, 4096")
            a(f"s_add_u32 s{sB}, s{sB}, 4096")
        a(f"buffer_load_dwordx4 {vr(vA + 4 * ks, 4)}, v{vL16}, s[{SWS}:{SWS + 3}], s{sA} offen offset:{(ks % 4) * 1024}")
        a(f"buffer_load_dwordx4 {ar(4 * ks, 4)}, v{vL16}, s[{SWS}:{SWS + 3}], s{sB} offen offset:{(ks % 4) * 1024}")
    for ks in range(DEPTH):
        ld(ks)
    issued = DEPTH
    for ks in range(32):
        a(f"s_waitcnt vmcnt({2 * (issued - ks - 1)})")
        a(f"v_mfma_f32_32x32x16_bf16 {vr(vAcc, 16)}, {vr(vA + 4 * ks, 4)}, {ar(4 * ks, 4)}, {vr(vAcc, 16)}")
        if issued < 32:
            ld(issued)
            issued += 1
        if ks == 12:
            for g in range(4):
                d = vB2 + 8 + 4 * g
                a(f"v_lshlrev_b32 v{d}, 16, v{vB2 + 2 * g}")
                a(f"v_and_b32 v{d + 1}, 0xffff0000, v{vB2 + 2 * g}")
                a(f"v_lshlrev_b32 v{d + 2}, 16, v{vB2 + 2 * g + 1}")
                a(f"v_and_b32 v{d + 3}, 0xffff0000, v{vB2 + 2 * g + 1}")
            a(f"v_sub_f32 v{vG}, 1.0, v{vG}")
    a(f"s_lshl_b32 s{sT0}, s{sST}, 15")
    a(f"s_lshl_b32 s{sT1}, s{sNT}, 6")
    a(f"s_add_u32 s{sT0}, s{sT0}, s{sT1}")
    a("s_nop 15")
    for r in range(16):
        a(f"v_fmac_f32 v{vAcc + r}, v{vG}, v{vB2 + 8 + r}")
    for r in range(8):
        a(f"v_cvt_pk_bf16_f32 v{vB2 + r}, v{vAcc + 2 * r}, v{vAcc + 2 * r + 1}")
    a("s_nop 1")
    for p in range(2):
        a(f"v_permlane32_swap_b32 v{vB2 + 4 * p}, v{vB2 + 4 * p + 2}")
        a(f"v_permlane32_swap_b32 v{vB2 + 4 * p + 1}, v{vB2 + 4 * p + 3}")
    a("s_nop 1")
    for p in range(2):
        a(f"buffer_store_dwordx4 {vr(vB2 + 4 * p, 4)}, v{T + 4}, s[{SO}:{SO + 3}], s{sT0} offen offset:{32 * p}")
    a.label("K3_end")
    a("s_endpgm")


def main():
    a = Asm()
    a.raw("; @launch kernel=k1_kernel grid=(256,1,1) block=(256,1,1) lds=163840")
    a.raw("; @launch kernel=k2_kernel grid=(256,1,1) block=(256,1,1) lds=131072")
    a.raw("; @launch kernel=k3_kernel grid=(256,1,1) block=(256,1,1) lds=0")
    a.raw('.amdgcn_target "amdgcn-amd-amdhsa--gfx950"')
    a.raw(".text")
    gen_k1(a)
    gen_k2(a)
    gen_k3(a)
    s = a.text()
    s += kernel_desc("k1_kernel", 384, 256)
    s += kernel_desc("k2_kernel", 320, 256)
    s += kernel_desc("k3_kernel", 320, 192)
    out = sys.argv[1] if len(sys.argv) > 1 else f"cdna_kernels/{NAME}.s"
    open(out, "w").write(s)


main()
```

```python
import struct, math, sys

NAME = "gated_mix__softmax_full_mha__dense_activation_gelu__prompt"
MB = 1 << 20
QF, KF, VF, HF, W2F, WOF, OF, GG, F2 = 0, 2 * MB, 4 * MB, 6 * MB, 14 * MB, 16 * MB, 17 * MB, 19 * MB, 20 * MB
WS_BYTES = 40 * MB
LOG2E = 1.4426950408889634


def f32bits(x):
    return struct.unpack("<I", struct.pack("<f", x))[0]


PROF = len(sys.argv) > 2 and sys.argv[2] == "prof"
OPT = set(sys.argv[3:])
def stamp(a, i):
    if PROF:
        a(f"s_memtime s[{90 + 2 * i}:{91 + 2 * i}]")
def stamp_rt(a, i):
    if PROF:
        a(f"s_memrealtime s[{90 + 2 * i}:{91 + 2 * i}]")
def dump(a, kidx, SWS, sW, n=6):
    if not PROF:
        return
    a("s_waitcnt vmcnt(0) lgkmcnt(0)")
    a("s_lshl_b32 s3, s2, 2")
    a(f"s_add_u32 s3, s3, s{sW}")
    a("s_lshl_b32 s3, s3, 6")
    a(f"s_add_u32 s3, s3, {(32 + kidx) * MB:#x}")
    a("v_mov_b32 v1, 0")
    a("s_mov_b64 exec, 1")
    for i in range(n):
        a(f"v_mov_b32 v2, s{90 + 2 * i}")
        a(f"buffer_store_dword v2, v1, s[{SWS}:{SWS + 3}], s3 offen offset:{4 * i}")


class Asm:
    def __init__(self):
        self.L = []

    def __call__(self, s):
        for line in s.strip("\n").split("\n"):
            self.L.append("    " + line.strip())

    def label(self, l):
        self.L.append(l + ":")

    def raw(self, s):
        self.L.append(s)

    def text(self):
        return "\n".join(self.L) + "\n"


def vr(b, n=1, f="v"):
    return f"{f}{b}" if n == 1 else f"{f}[{b}:{b + n - 1}]"


def ar(b, n=1):
    return vr(b, n, "a")


def srd(a, d, lo, nbytes):
    a(f"s_mov_b32 s{d}, s{lo}")
    a(f"s_mov_b32 s{d + 1}, s{lo + 1}")
    a(f"s_mov_b32 s{d + 2}, {nbytes:#x}")
    a(f"s_mov_b32 s{d + 3}, 0x00020000")


def kernel_head(a, name):
    a.raw(f".globl {name}")
    a.raw(".p2align 8")
    a.raw(f".type {name},@function")
    a.label(name)


def kernel_desc(name, nv, acc, ns=102):
    return f""".section .rodata,"a"
.p2align 6
.amdhsa_kernel {name}
  .amdhsa_next_free_vgpr {nv}
  .amdhsa_next_free_sgpr {ns}
  .amdhsa_accum_offset {acc}
  .amdhsa_group_segment_fixed_size 0
  .amdhsa_kernarg_size 96
  .amdhsa_user_sgpr_count 2
  .amdhsa_user_sgpr_kernarg_segment_ptr 1
  .amdhsa_system_sgpr_workgroup_id_x 1
.end_amdhsa_kernel
"""


def gen_k1(a):
    kernel_head(a, "k1_kernel")
    SX, SWQ, SW1, SB1, SGT, SWS, SWP, SWO = 24, 28, 32, 36, 40, 44, 48, 52
    sCQ, sRB, sW, sC0, sXB, sWB, sW1B, sLW4, sLW1, sT0, sT1, sT2, sST = 56, 57, 58, 59, 60, 61, 62, 63, 64, 65, 66, 67, 68
    sEXM = 70
    sSC = 72
    sCH = 76
    vL, vXE, vXO, vWS_, vW1S, vWPS, vT0, vT1, vT2, vTP = 1, 2, 3, 4, 5, 6, 7, 8, 9, 10
    vXR = 11
    vStN, vStV, vL16, vGA, vTmp = 15, 16, 17, 18, 19
    vGV = 24
    vWF = 32
    vAQ = 96
    vAF = 144
    vB = 208
    vPK = 236

    a("s_cmp_ge_u32 s2, 256")
    a("s_cbranch_scc1 K1_end")
    stamp_rt(a, 0)
    stamp(a, 1)
    a("s_load_dwordx4 s[4:7], s[0:1], 0")
    a("s_load_dwordx2 s[8:9], s[0:1], 16")
    a("s_load_dwordx4 s[12:15], s[0:1], 32")
    a("s_load_dwordx2 s[16:17], s[0:1], 48")
    a("s_load_dwordx2 s[18:19], s[0:1], 64")
    a("s_load_dwordx2 s[20:21], s[0:1], 88")
    a(f"v_lshrrev_b32 v{vTmp}, 6, v0")
    a(f"v_and_b32 v{vL}, 63, v0")
    a(f"v_readfirstlane_b32 s{sW}, v{vTmp}")
    a(f"""
    s_and_b32 s{sT0}, s2, 7
    s_lshr_b32 s{sT1}, s2, 3
    s_and_b32 s{sCQ}, s{sT0}, 3
    s_lshl_b32 s{sCQ}, s{sCQ}, 2
    s_and_b32 s{sT2}, s{sT1}, 3
    s_add_u32 s{sCQ}, s{sCQ}, s{sT2}
    s_lshr_b32 s{sRB}, s{sT0}, 2
    s_lshl_b32 s{sRB}, s{sRB}, 3
    s_lshr_b32 s{sT1}, s{sT1}, 2
    s_add_u32 s{sRB}, s{sRB}, s{sT1}
    s_lshl_b32 s{sT2}, s{sT2}, 1
    s_add_u32 s{sC0}, s{sT1}, s{sT2}
    """)
    for t in range(8):
        a(f"s_add_u32 s{sCH + t}, s{sC0}, {t}")
        a(f"s_and_b32 s{sCH + t}, s{sCH + t}, 7")
    T = vTmp
    a(f"""
    v_lshrrev_b32 v{T}, 3, v{vL}
    v_lshlrev_b32 v{vXE}, 10, v{T}
    v_and_b32 v{T}, 7, v{vL}
    v_lshrrev_b32 v{T + 1}, 4, v{vL}
    v_xor_b32 v{T}, v{T}, v{T + 1}
    v_lshl_add_u32 v{vXE}, v{T}, 4, v{vXE}
    v_xor_b32 v{vXO}, 64, v{vXE}
    v_lshrrev_b32 v{T}, 2, v{vL}
    v_and_b32 v{T + 1}, 3, v{vL}
    v_lshlrev_b32 v{T + 1}, 4, v{T + 1}
    v_mul_u32_u24 v{vWS_}, 3072, v{T}
    v_add_u32 v{vWS_}, v{vWS_}, v{T + 1}
    v_mul_u32_u24 v{vW1S}, 3584, v{T}
    v_add_u32 v{vW1S}, v{vW1S}, v{T + 1}
    v_lshl_add_u32 v{vWPS}, v{T}, 10, v{T + 1}
    v_lshlrev_b32 v{vL16}, 4, v{vL}
    """)
    a("s_waitcnt lgkmcnt(0)")
    srd(a, SX, 4, 2 * MB)
    srd(a, SWQ, 6, 512 * 3072)
    a(f"""
    s_lshl_b32 s{sXB}, s{sRB}, 17
    s_lshl_b32 s{sT0}, s{sW}, 15
    s_add_u32 s{sXB}, s{sXB}, s{sT0}
    s_mul_i32 s{sWB}, s{sW}, {16 * 3072}
    s_mul_i32 s{sT0}, s{sCQ}, 192
    s_add_u32 s{sWB}, s{sWB}, s{sT0}
    s_lshl_b32 s{sLW4}, s{sW}, 12
    s_lshl_b32 s{sLW1}, s{sW}, 10
    """)

    vm = []

    def issue_x(t):
        slot = (t % 4) * 16384
        a(f"s_lshl_b32 s{sT0}, s{sCH + t}, 7")
        a(f"s_add_u32 s{sT0}, s{sT0}, s{sXB}")
        for q in range(4):
            a(f"s_add_u32 m0, s{sLW4}, {slot + q * 1024}")
            a(f"s_add_u32 s{sT1}, s{sT0}, {q * 8192}")
            a(f"buffer_load_dwordx4 v{vXE if q % 2 == 0 else vXO}, s[{SX}:{SX + 3}], s{sT1} offen lds")
            vm.append(("item", t))

    def issue_wq(t):
        base = 65536 + t * 12288
        a(f"s_mul_i32 s{sT0}, s{sCH + t}, {64 * 3072}")
        a(f"s_add_u32 s{sT0}, s{sT0}, s{sWB}")
        for tile in range(3):
            a(f"s_add_u32 m0, s{sLW1}, {base + tile * 4096}")
            a(f"s_add_u32 s{sT1}, s{sT0}, {tile * 64}")
            a(f"buffer_load_dwordx4 v{vWS_}, s[{SWQ}:{SWQ + 3}], s{sT1} offen lds")
            vm.append(("item", t))

    def f1_base(u):
        return 65536 + u * 16384 if u < 6 else (u - 6) * 16384

    def issue_w1(u):
        base = f1_base(u)
        a(f"s_mul_i32 s{sT0}, s{sCH + u}, {64 * 3584}")
        a(f"s_add_u32 s{sT0}, s{sT0}, s{sW1B}")
        for tile in range(4):
            a(f"s_add_u32 m0, s{sLW1}, {base + tile * 4096}")
            a(f"s_add_u32 s{sT1}, s{sT0}, {tile * 64}")
            if tile == 3:
                a(f"s_mov_b64 exec, s[{sEXM}:{sEXM + 1}]")
            a(f"buffer_load_dwordx4 v{vW1S}, s[{SW1}:{SW1 + 3}], s{sT1} offen lds")
            vm.append(("item", 8 + u))
        a("s_mov_b32 exec_lo, -1")
        a("s_mov_b32 exec_hi, 0")
        b = base + 3 * 4096
        if b >= 65536:
            a(f"v_add_u32 v{vTmp}, {b - (b & 0xffff)}, v{vGA}")
            a(f"ds_write_b16 v{vTmp}, v{vGV + u} offset:{b & 0xffff}")
        else:
            a(f"ds_write_b16 v{vGA}, v{vGV + u} offset:{b}")
        a("s_mov_b64 exec, -1")

    def wait_item(t):
        last = max(i for i, tg in enumerate(vm) if tg == ("item", t))
        n = len(vm) - 1 - last
        a(f"s_waitcnt vmcnt({n})")

    issue_x(0)
    issue_wq(0)
    issue_x(1)
    srd(a, SW1, 12, 512 * 3584)
    srd(a, SB1, 14, 3584)
    srd(a, SGT, 18, 1024)
    srd(a, SWS, 20, WS_BYTES)
    srd(a, SWO, 8, 512 * 1024)
    a(f"""
    s_mul_i32 s{sW1B}, s{sW}, {16 * 3584}
    s_mul_i32 s{sT0}, s{sCQ}, 224
    s_add_u32 s{sW1B}, s{sW1B}, s{sT0}
    s_mov_b32 s{sEXM}, 0x33333333
    s_mov_b32 s{sEXM + 1}, 0x33333333
    s_lshl_b32 s{sST}, s{sRB}, 2
    s_add_u32 s{sST}, s{sST}, s{sW}
    """)
    a(f"v_lshrrev_b32 v{T}, 5, v{vL}")
    a(f"v_lshlrev_b32 v{T + 2}, 3, v{T}")
    for k in range(14):
        a(f"buffer_load_dwordx2 {vr(vB + 2 * k, 2)}, v{T + 2}, s[{SB1}:{SB1 + 3}], s{sT0} offen offset:{16 * k}")
        vm.append(("small", 0))
    a(f"v_and_b32 v{T + 3}, 15, v{vL}")
    a(f"v_lshlrev_b32 v{T + 3}, 1, v{T + 3}")
    a(f"s_lshl_b32 s{sT2}, s{sW}, 5")
    for u in range(8):
        a(f"s_lshl_b32 s{sT1}, s{sCH + u}, 7")
        a(f"s_add_u32 s{sT1}, s{sT1}, s{sT2}")
        a(f"buffer_load_ushort v{vGV + u}, v{T + 3}, s[{SGT}:{SGT + 3}], s{sT1} offen")
        vm.append(("small", 0))
    issue_wq(1)
    a(f"""
    v_and_b32 v{T + 1}, 31, v{vL}
    v_bfe_u32 v{T + 2}, v{vL}, 1, 3
    v_xor_b32 v{T + 2}, v{T + 2}, v{T}
    v_lshlrev_b32 v{T + 2}, 4, v{T + 2}
    v_lshl_add_u32 v{vXR}, v{T + 1}, 7, v{T + 2}
    v_add_u32 v{vXR}, s{sLW4}, v{vXR}
    v_xor_b32 v{vXR + 1}, 32, v{vXR}
    v_xor_b32 v{vXR + 2}, 64, v{vXR}
    v_xor_b32 v{vXR + 3}, 96, v{vXR}
    """)
    a(f"""
    v_bfe_u32 v{T + 2}, v{vL}, 2, 2
    v_lshlrev_b32 v{T + 2}, 6, v{T + 2}
    v_bfe_u32 v{T + 3}, v{vL}, 4, 1
    v_lshl_add_u32 v{T + 2}, v{T + 3}, 5, v{T + 2}
    v_and_b32 v{T + 3}, 3, v{vL}
    v_lshl_add_u32 v{T + 2}, v{T + 3}, 3, v{T + 2}
    v_lshl_add_u32 v{vT0}, v{T}, 9, v{T + 2}
    v_lshl_add_u32 v{vTP}, v{T}, 8, v{T + 2}
    v_add_u32 v{vT1}, 0x10000, v{vT0}
    v_add_u32 v{vT2}, 0x20000, v{vT0}
    """)
    a(f"""
    v_and_b32 v{T + 2}, 0x33, v{vL}
    v_bfe_u32 v{T + 3}, v{vL}, 2, 1
    v_lshl_or_b32 v{T + 2}, v{T + 3}, 3, v{T + 2}
    v_bfe_u32 v{T + 3}, v{vL}, 3, 1
    v_lshl_or_b32 v{T + 2}, v{T + 3}, 2, v{T + 2}
    v_lshlrev_b32 v{vStN}, 4, v{T + 2}
    """)
    a(f"""
    v_and_b32 v{T + 2}, 15, v{vL}
    v_lshl_add_u32 v{T + 2}, v{T}, 4, v{T + 2}
    v_lshlrev_b32 v{T + 2}, 4, v{T + 2}
    v_bfe_u32 v{T + 3}, v{vL}, 4, 1
    v_lshl_add_u32 v{vStV}, v{T + 3}, 16, v{T + 2}
    """)
    a(f"""
    v_and_b32 v{T + 2}, 15, v{vL}
    v_lshlrev_b32 v{T + 2}, 6, v{T + 2}
    v_lshl_add_u32 v{T + 2}, v{T + 3}, 3, v{T + 2}
    v_add_u32 v{T + 2}, 32, v{T + 2}
    v_add_u32 v{vGA}, s{sLW1}, v{T + 2}
    """)
    cq_scale = f32bits(0.25 * LOG2E)
    a(f"s_mul_i32 s{sT0}, s{sCQ}, 3")
    for p in range(3):
        a(f"s_add_u32 s{sT1}, s{sT0}, {p}")
        a(f"s_cmp_lt_u32 s{sT1}, 16")
        a(f"s_cselect_b32 s{sSC + p}, {cq_scale:#x}, 1.0")

    def tr_addr(off):
        b = [vT0, vT1, vT2][off >> 16]
        return b, off & 0xffff

    def reads_ks(imgbase, ntiles, ks, xslot=None, xdst=None):
        n = 0
        if xslot is not None:
            a(f"ds_read_b128 {ar(xdst, 4)}, v{vXR + ks} offset:{xslot}")
            n += 1
        for tile in range(ntiles):
            for u in range(2):
                b, o = tr_addr(imgbase + tile * 4096 + ks * 1024 + u * 256)
                a(f"ds_read_b64_tr_b16 {vr(vWF + ks * 16 + tile * 4 + u * 2, 2)}, v{b} offset:{o}")
                n += 1
        return n

    def qkv_variant(var):
        nonlocal vm
        saved = list(vm)
        for t in range(8):
            nxt = t + 2
            if nxt < 8:
                issue_x(nxt)
                issue_wq(nxt)
            else:
                issue_w1(nxt - 8)
            wait_item(t)
            a("s_barrier")
            img = 65536 + t * 12288
            xs = (t % 4) * 16384

            def mf(ks):
                for p in range(3):
                    wf = vr(vWF + ks * 16 + p * 4, 4)
                    xf = ar(16 * t + 4 * ks, 4)
                    acc = vr(vAQ + 16 * p, 16)
                    c = "0" if (t == 0 and ks == 0) else acc
                    if var[p] == "N":
                        a(f"v_mfma_f32_32x32x16_bf16 {acc}, {wf}, {xf}, {c}")
                    else:
                        a(f"v_mfma_f32_32x32x16_bf16 {acc}, {xf}, {wf}, {c}")
            reads_ks(img, 3, 0, xs, 16 * t)
            reads_ks(img, 3, 1, xs, 16 * t + 4)
            a("s_waitcnt lgkmcnt(7)")
            mf(0)
            reads_ks(img, 3, 2, xs, 16 * t + 8)
            a("s_waitcnt lgkmcnt(7)")
            mf(1)
            reads_ks(img, 3, 3, xs, 16 * t + 12)
            a("s_waitcnt lgkmcnt(7)")
            mf(2)
            a("s_waitcnt lgkmcnt(0)")
            mf(3)
            if t == 2:
                for k in range(14):
                    d = vAF + 4 * k
                    a(f"v_lshlrev_b32 v{d}, 16, v{vB + 2 * k}")
                    a(f"v_and_b32 v{d + 1}, 0xffff0000, v{vB + 2 * k}")
                    a(f"v_lshlrev_b32 v{d + 2}, 16, v{vB + 2 * k + 1}")
                    a(f"v_and_b32 v{d + 3}, 0xffff0000, v{vB + 2 * k + 1}")
                for k in range(56, 64):
                    a(f"v_mov_b32 v{vAF + k}, 0")
        a(f"s_mul_i32 s{sT0}, s{sCQ}, {3 * 131072}")
        a(f"s_lshl_b32 s{sT1}, s{sST}, 10")
        a(f"s_add_u32 s{sT0}, s{sT0}, s{sT1}")
        a("s_nop 7")
        for p in range(3):
            acc = vAQ + 16 * p
            if p == 2:
                a("s_nop 3")
            if var[p] == "N":
                for r in range(16):
                    a(f"v_mul_f32 v{acc + r}, s{sSC + p}, v{acc + r}")
            d = vB + 8 * p
            for r in range(8):
                a(f"v_cvt_pk_bf16_f32 v{d + r}, v{acc + 2 * r}, v{acc + 2 * r + 1}")
            a(f"s_add_u32 s{sT1}, s{sT0}, {p * 131072}")
            if var[p] == "N":
                a(f"s_add_u32 s{sT2}, s{sT1}, 65536")
                a(f"buffer_store_dwordx4 {vr(d, 4)}, v{vStN}, s[{SWS}:{SWS + 3}], s{sT1} offen")
                a(f"buffer_store_dwordx4 {vr(d + 4, 4)}, v{vStN}, s[{SWS}:{SWS + 3}], s{sT2} offen")
            else:
                a(f"buffer_store_dwordx4 {vr(d, 4)}, v{vStV}, s[{SWS}:{SWS + 3}], s{sT1} offen")
                a(f"buffer_store_dwordx4 {vr(d + 4, 4)}, v{vStV}, s[{SWS}:{SWS + 3}], s{sT1} offen offset:512")
            vm.append(("st", 0))
            vm.append(("st", 0))
        res = list(vm)
        vm = saved
        return res

    a(f"s_cmp_lt_u32 s{sCQ}, 10")
    a("s_cbranch_scc1 K1_NNN")
    a(f"s_cmp_eq_u32 s{sCQ}, 10")
    a("s_cbranch_scc1 K1_NNV")
    qkv_variant("VVV")
    a("s_branch K1_ffn")
    a.label("K1_NNV")
    qkv_variant("NNV")
    a("s_branch K1_ffn")
    a.label("K1_NNN")
    vm = qkv_variant("NNN")
    a.label("K1_ffn")
    stamp(a, 2)

    sU, sPB, sPD = 84, 85, 86
    a(f"""
    s_lshl_b32 s{sU}, s2, 3
    s_lshl_b32 s{sT0}, s{sW}, 1
    s_add_u32 s{sU}, s{sU}, s{sT0}
    s_mov_b32 s{sT1}, {512 * 1024:#x}
    s_mov_b32 s{sPD}, {WOF:#x}
    s_cmp_lt_u32 s{sU}, 1792
    s_cselect_b32 s{SWP}, s16, s8
    s_cselect_b32 s{SWP + 1}, s17, s9
    s_cselect_b32 s{SWP + 2}, {1792 * 1024:#x}, s{sT1}
    s_mov_b32 s{SWP + 3}, 0x00020000
    s_cselect_b32 s{sT0}, 0, 1792
    s_cselect_b32 s{sT2}, 112, 32
    s_cselect_b32 s{sPD}, {W2F:#x}, s{sPD}
    s_sub_u32 s{sU}, s{sU}, s{sT0}
    s_lshr_b32 s{sT0}, s{sU}, 4
    s_and_b32 s{sT1}, s{sU}, 15
    s_lshl_b32 s{sPB}, s{sT0}, 14
    s_lshl_b32 s{sU}, s{sT1}, 6
    s_add_u32 s{sPB}, s{sPB}, s{sU}
    s_mul_i32 s{sT1}, s{sT1}, s{sT2}
    s_add_u32 s{sT1}, s{sT1}, s{sT0}
    s_lshl_b32 s{sT1}, s{sT1}, 10
    s_add_u32 s{sPD}, s{sPD}, s{sT1}
    s_lshl_b32 s{sU}, s{sT2}, 10
    """)
    sP3, sD3 = 87, 88
    a(f"""
    s_lshr_b32 s{sT0}, s2, 4
    s_add_u32 s{sT0}, s{sT0}, 16
    s_and_b32 s{sT1}, s2, 15
    s_lshl_b32 s{sP3}, s{sT0}, 14
    s_lshl_b32 s{sT2}, s{sT1}, 6
    s_add_u32 s{sP3}, s{sP3}, s{sT2}
    s_lshl_b32 s{sT1}, s{sT1}, 5
    s_add_u32 s{sT1}, s{sT1}, s{sT0}
    s_lshl_b32 s{sT1}, s{sT1}, 10
    s_add_u32 s{sD3}, s{sT1}, {WOF:#x}
    """)
    PKL = 32768

    def issue_pack():
        a(f"s_add_u32 m0, s{sLW4}, {PKL}")
        a(f"s_add_u32 s{sT1}, s{sPB}, 64")
        a(f"buffer_load_dwordx4 v{vWPS}, s[{SWP}:{SWP + 3}], s{sPB} offen lds")
        a(f"s_add_u32 m0, s{sLW4}, {PKL + 1024}")
        a("s_nop 0")
        a(f"buffer_load_dwordx4 v{vWPS}, s[{SWP}:{SWP + 3}], s{sT1} offen lds")
        a(f"s_add_u32 m0, s{sLW4}, {PKL + 2048}")
        a("s_nop 0")
        a(f"buffer_load_dwordx4 v{vWPS}, s[{SWO}:{SWO + 3}], s{sP3} offen lds")
        for _ in range(3):
            vm.append(("pack", 0))

    for u in range(8):
        if u + 2 < 8:
            issue_w1(u + 2)
        if u == 0:
            issue_pack()
        wait_item(8 + u)
        a("s_waitcnt lgkmcnt(0)")
        a("s_barrier")
        img = f1_base(u)

        def mf(ks):
            for p in range(4):
                wf = vr(vWF + ks * 16 + p * 4, 4)
                xf = ar(16 * u + 4 * ks, 4)
                acc = vr(vAF + 16 * p, 16)
                a(f"v_mfma_f32_32x32x16_bf16 {acc}, {wf}, {xf}, {acc}")
        reads_ks(img, 4, 0)
        reads_ks(img, 4, 1)
        a("s_waitcnt lgkmcnt(8)")
        mf(0)
        reads_ks(img, 4, 2)
        a("s_waitcnt lgkmcnt(8)")
        mf(1)
        reads_ks(img, 4, 3)
        a("s_waitcnt lgkmcnt(8)")
        mf(2)
        a("s_waitcnt lgkmcnt(0)")
        mf(3)
        if u == 4:
            a(f"v_add_u32 v{vTmp}, s{sLW4}, v{vTP}")
            for k in range(3):
                for uu in range(2):
                    a(f"ds_read_b64_tr_b16 {vr(vPK + 4 * k + 2 * uu, 2)}, v{vTmp} offset:{PKL + k * 1024 + uu * 512}")
            a("s_waitcnt lgkmcnt(0)")
            a(f"s_add_u32 s{sT1}, s{sPD}, s{sU}")
            a(f"buffer_store_dwordx4 {vr(vPK, 4)}, v{vL16}, s[{SWS}:{SWS + 3}], s{sPD} offen")
            a(f"buffer_store_dwordx4 {vr(vPK + 4, 4)}, v{vL16}, s[{SWS}:{SWS + 3}], s{sT1} offen")
            a(f"buffer_store_dwordx4 {vr(vPK + 8, 4)}, v{vL16}, s[{SWS}:{SWS + 3}], s{sD3} offen")
            for _ in range(3):
                vm.append(("st", 0))
    stamp(a, 3)
    c0 = -2.0 * LOG2E * math.sqrt(2.0 / math.pi)
    c1 = c0 * 0.044715
    vQ = vWF
    vC0 = vWF + 2
    vC1 = vWF + 4
    vG = vWF + 6
    a(f"v_mov_b32 v{vC0}, {f32bits(c0):#x}")
    a(f"v_mov_b32 v{vC0 + 1}, {f32bits(c0):#x}")
    a(f"v_mov_b32 v{vC1}, {f32bits(c1):#x}")
    a(f"v_mov_b32 v{vC1 + 1}, {f32bits(c1):#x}")
    a(f"s_mul_i32 s{sT0}, s{sST}, {112 * 1024}")
    a(f"s_mul_i32 s{sT1}, s{sCQ}, {7 * 1024}")
    a(f"s_add_u32 s{sT0}, s{sT0}, s{sT1}")
    a(f"s_add_u32 s{sT0}, s{sT0}, {HF:#x}")
    a(f"s_add_u32 s{sT1}, s{sT0}, 4096")
    a("s_nop 7")
    z = vAF + 56
    a(f"v_mul_f32 v{vG}, {f32bits(LOG2E):#x}, v{z}")
    a(f"v_exp_f32 v{vQ}, v{vG}")
    a(f"v_exp_f32 v{vG}, -v{vG}")
    a(f"v_add_f32 v{vQ}, 1.0, v{vQ}")
    a(f"v_add_f32 v{vG}, 1.0, v{vG}")
    a(f"v_min_f32 v{vQ}, {f32bits(2.0 ** 120):#x}, v{vQ}")
    a(f"v_rcp_f32 v{vG}, v{vG}")
    a(f"v_mov_b32 v{vQ + 1}, v{vQ}")
    a(f"s_cmp_lg_u32 s{sCQ}, 0")
    a("s_cbranch_scc1 K1_nog")
    a(f"v_lshlrev_b32 v{vTmp}, 2, v{vL}")
    a(f"s_lshl_b32 s{sT2}, s{sST}, 7")
    a(f"s_add_u32 s{sT2}, s{sT2}, {GG:#x}")
    a("s_mov_b32 exec_hi, 0")
    a(f"buffer_store_dword v{vG}, v{vTmp}, s[{SWS}:{SWS + 3}], s{sT2} offen")
    a("s_mov_b64 exec, -1")
    a.label("K1_nog")
    tmp = vWF + 8
    for k in range(7):
        h = vAF + 8 * k
        t = tmp + (k % 2) * 16
        for i in range(4):
            a(f"v_pk_mul_f32 {vr(t + 2 * i, 2)}, {vr(h + 2 * i, 2)}, {vr(h + 2 * i, 2)}")
        for i in range(4):
            a(f"v_pk_fma_f32 {vr(t + 2 * i, 2)}, {vr(t + 2 * i, 2)}, {vr(vC1, 2)}, {vr(vC0, 2)}")
        for i in range(4):
            a(f"v_pk_mul_f32 {vr(t + 2 * i, 2)}, {vr(t + 2 * i, 2)}, {vr(h + 2 * i, 2)}")
        for i in range(8):
            a(f"v_exp_f32 v{t + i}, v{t + i}")
        for i in range(4):
            a(f"v_pk_fma_f32 {vr(t + 2 * i, 2)}, {vr(t + 2 * i, 2)}, {vr(vQ, 2)}, {vr(vQ, 2)}")
        for i in range(8):
            a(f"v_rcp_f32 v{t + i}, v{t + i}")
        for i in range(4):
            a(f"v_pk_mul_f32 {vr(t + 2 * i, 2)}, {vr(t + 2 * i, 2)}, {vr(h + 2 * i, 2)}")
        for i in range(4):
            a(f"v_cvt_pk_bf16_f32 v{t + 8 + i}, v{t + 2 * i}, v{t + 2 * i + 1}")
        so = sT0 if k < 4 else sT1
        a(f"buffer_store_dwordx4 {vr(t + 8, 4)}, v{vL16}, s[{SWS}:{SWS + 3}], s{so} offen offset:{(k % 4) * 1024}")
    if PROF:
        a("s_waitcnt vmcnt(0)")
    stamp(a, 4)
    stamp_rt(a, 5)
    dump(a, 0, SWS, sW)
    a.label("K1_end")
    a("s_endpgm")


def gen_k2(a):
    kernel_head(a, "k2_kernel")
    SWS = 8
    sW, sHead, sQB, sT0, sT1, sT2, sKB, sLW2, sQT, sFR, sFC = 12, 13, 14, 15, 16, 17, 18, 19, 20, 21, 22
    sH0, sH1, sN0, sN1, sCnt = 23, 24, 25, 26, 27
    sVM = 28
    sKD = 30
    sLD = 31
    vL, vL16, vKA, vVA, vIdx, vTmp = 1, 2, 3, 4, 5, 6
    vQ = 16
    vK = 24
    vV = 32
    vS = 48
    vM = 80
    vO = 112
    vF = 144
    vGq = 208
    aR = 0

    a("s_cmp_ge_u32 s2, 256")
    a("s_cbranch_scc1 K2_end")
    stamp_rt(a, 0)
    stamp(a, 1)
    a("s_load_dwordx2 s[4:5], s[0:1], 88")
    a(f"v_lshrrev_b32 v{vTmp}, 6, v0")
    a(f"v_and_b32 v{vL}, 63, v0")
    a(f"v_readfirstlane_b32 s{sW}, v{vTmp}")
    a(f"v_lshlrev_b32 v{vL16}, 4, v{vL}")
    a(f"""
    s_and_b32 s{sT0}, s2, 7
    s_lshr_b32 s{sT1}, s2, 3
    s_lshl_b32 s{sHead}, s{sT0}, 2
    s_and_b32 s{sT2}, s{sT1}, 3
    s_add_u32 s{sHead}, s{sHead}, s{sT2}
    s_lshr_b32 s{sQB}, s{sT1}, 2
    s_mov_b32 s{sFR}, s{sHead}
    s_mov_b32 s{sFC}, s{sQB}
    s_lshl_b32 s{sKB}, s{sHead}, 16
    s_lshl_b32 s{sLW2}, s{sW}, 11
    s_lshl_b32 s{sQT}, s{sQB}, 3
    s_lshl_b32 s{sT0}, s{sW}, 1
    s_add_u32 s{sQT}, s{sQT}, s{sT0}
    s_add_u32 s{sKD}, s{sKB}, s{sLW2}
    s_add_u32 s{sKD}, s{sKD}, {KF:#x}
    s_mov_b32 s{sLD}, s{sLW2}
    s_mov_b32 s{sVM}, 0x0000ffff
    s_mov_b32 s{sVM + 1}, 0x0000ffff
    """)
    T = vTmp
    a(f"""
    v_and_b32 v{T + 2}, 0x33, v{vL}
    v_bfe_u32 v{T + 3}, v{vL}, 2, 1
    v_lshl_or_b32 v{T + 2}, v{T + 3}, 3, v{T + 2}
    v_bfe_u32 v{T + 3}, v{vL}, 3, 1
    v_lshl_or_b32 v{T + 2}, v{T + 3}, 2, v{T + 2}
    v_lshlrev_b32 v{T + 2}, 4, v{T + 2}
    v_and_b32 v{T + 4}, 31, v{vL}
    v_lshlrev_b32 v{T + 4}, 2, v{T + 4}
    """)
    a("s_waitcnt lgkmcnt(0)")
    srd(a, SWS, 4, WS_BYTES)
    vm = []

    def dma_chunk():
        a(f"s_mov_b32 m0, s{sLD}")
        a(f"s_add_u32 s{sT0}, s{sKD}, {VF - KF:#x}")
        a(f"buffer_load_dwordx4 v{vL16}, s[{SWS}:{SWS + 3}], s{sKD} offen lds")
        a(f"buffer_load_dwordx4 v{vL16}, s[{SWS}:{SWS + 3}], s{sKD} offen offset:1024 lds")
        a(f"s_add_u32 m0, s{sLD}, 65536")
        a(f"s_add_u32 s{sKD}, s{sKD}, 8192")
        a(f"buffer_load_dwordx4 v{vL16}, s[{SWS}:{SWS + 3}], s{sT0} offen lds")
        a(f"buffer_load_dwordx4 v{vL16}, s[{SWS}:{SWS + 3}], s{sT0} offen offset:1024 lds")
        a(f"s_add_u32 s{sLD}, s{sLD}, 8192")

    a(f"s_lshl_b32 s{sT1}, s{sQT}, 10")
    a(f"s_add_u32 s{sT1}, s{sT1}, s{sKB}")
    a(f"buffer_load_dwordx4 {vr(vQ, 4)}, v{T + 2}, s[{SWS}:{SWS + 3}], s{sT1} offen")
    a(f"buffer_load_dwordx4 {vr(vQ + 4, 4)}, v{T + 2}, s[{SWS}:{SWS + 3}], s{sT1} offen offset:1024")
    dma_chunk()
    a(f"s_lshl_b32 s{sT1}, s{sQT}, 7")
    a(f"s_add_u32 s{sT1}, s{sT1}, {GG:#x}")
    a(f"buffer_load_dword v{vGq}, v{T + 4}, s[{SWS}:{SWS + 3}], s{sT1} offen")
    a(f"buffer_load_dword v{vGq + 1}, v{T + 4}, s[{SWS}:{SWS + 3}], s{sT1} offen offset:128")
    dma_chunk()
    a(f"""
    s_mul_i32 s{sT0}, s{sW}, {28 * 1024}
    s_mul_i32 s{sH0}, s{sFR}, {2 * 112 * 1024}
    s_add_u32 s{sH0}, s{sH0}, s{sT0}
    s_add_u32 s{sH0}, s{sH0}, {HF:#x}
    s_add_u32 s{sH1}, s{sH0}, {112 * 1024}
    s_mul_i32 s{sN0}, s{sFC}, {2 * 112 * 1024}
    s_add_u32 s{sN0}, s{sN0}, s{sT0}
    s_add_u32 s{sN0}, s{sN0}, {W2F:#x}
    s_add_u32 s{sN1}, s{sN0}, {112 * 1024}
    """)
    a(f"v_mov_b32 v{vKA}, v{vL16}")
    a(f"""
    v_and_b32 v{T}, 15, v{vL}
    v_lshrrev_b32 v{T + 1}, 5, v{vL}
    v_lshl_add_u32 v{T}, v{T + 1}, 4, v{T}
    v_lshlrev_b32 v{T}, 4, v{T}
    v_add_u32 v{vVA}, 0x10000, v{T}
    v_mov_b32 v{vIdx}, 0xdddddddd
    """)
    if "zrows" in OPT:
        a(f"v_and_b32 v{T}, 27, v{vL}")
        a(f"v_mov_b32 v{T + 1}, 0x3f803f80")
        a(f"v_cmp_eq_u32 vcc, 16, v{T}")
        a("s_nop 1")
        for r in range(16):
            a(f"v_cndmask_b32 v{vV + r}, 0, v{T + 1}, vcc")
    else:
      for r in range(16):
        a(f"v_mov_b32 v{vV + r}, 0x3f803f80")
    for r in range(32):
        a(f"v_mov_b32 v{vO + r}, 0")
    for r in range(64):
        a(f"v_mov_b32 v{vF + r}, 0")
    a("s_waitcnt vmcnt(6)")
    a("s_barrier")
    a(f"ds_read_b128 {vr(vK, 4)}, v{vKA}")
    a(f"ds_read_b128 {vr(vK + 4, 4)}, v{vKA} offset:1024")
    a(f"s_mov_b64 exec, s[{sVM}:{sVM + 1}]")
    a(f"ds_read_b128 {vr(vV, 4)}, v{vVA}")
    a(f"ds_read_b128 {vr(vV + 4, 4)}, v{vVA} offset:512")
    a("s_mov_b64 exec, -1")
    a("s_waitcnt lgkmcnt(3)")
    SA, SB = vS, vS + 16
    a(f"v_mfma_f32_32x32x16_bf16 {vr(SA, 16)}, {vr(vK, 4)}, {vr(vQ, 4)}, 0")
    a(f"v_mfma_f32_32x32x16_bf16 {vr(SB, 16)}, {vr(vK, 4)}, {vr(vQ + 4, 4)}, 0")
    a("s_nop 15")
    for X, (S, M) in enumerate(((SA, vM), (SB, vM + 16))):
        t = T + 4 * X
        a(f"v_max3_f32 v{t}, v{S}, v{S + 1}, v{S + 2}")
        for r in range(3, 15, 2):
            a(f"v_max3_f32 v{t}, v{t}, v{S + r}, v{S + r + 1}")
        a(f"v_max_f32 v{t}, v{t}, v{S + 15}")
        a(f"v_mov_b32 v{t + 1}, v{t}")
        a("s_nop 1")
        a(f"v_permlane32_swap_b32 v{t}, v{t + 1}")
        a("s_nop 1")
        a(f"v_max_f32 v{t}, v{t}, v{t + 1}")
        a(f"v_sub_f32 v{M}, 0, v{t}")
        for r in range(1, 16):
            a(f"v_mov_b32 v{M + r}, v{M}")
    a("s_nop 1")
    a(f"v_mfma_f32_32x32x16_bf16 {vr(SA, 16)}, {vr(vK, 4)}, {vr(vQ, 4)}, {vr(vM, 16)}")
    for r in range(8, 16):
        a(f"v_mov_b32 v{SB + r}, 0")
    a("s_nop 7")

    OA, OB = vO, vO + 16

    def exps(S, lo, hi):
        for r in range(lo, hi):
            a(f"v_exp_f32 v{S + r}, v{S + r}")

    def super_iter(ffn_mfma, ffn_load, dma, last):
        for tt in range(8):
            kb_cur = vK + 4 * (tt % 2)
            kb_nxt = vK + 4 * ((tt + 1) % 2)
            vb_cur = vV + 8 * (tt % 2)
            vb_oth = vV + 8 * ((tt + 1) % 2)
            ks = tt // 2
            ring = aR + 16 * ks
            fin = last and tt == 7
            if tt == 0 and dma:
                dma_chunk()
            if tt == 6 and not last:
                a(f"s_waitcnt vmcnt({SYNC_N[(ffn_mfma, ffn_load, dma)] if 'noload' not in OPT else (4 if dma else 0)})")
                if "nobar" not in OPT:
                    a("s_barrier")
            exps(SA, 0, 4)
            a(f"v_smfmac_f32_32x32x32_bf16 {vr(OB, 16)}, {vr(vb_oth + 4, 4)}, {vr(SB + 8, 8)}, v{vIdx}")
            exps(SA, 4, 8)
            a(f"v_mfma_f32_32x32x16_bf16 {vr(SB, 16)}, {vr(kb_cur, 4)}, {vr(vQ + 4, 4)}, {vr(vM + 16, 16)}")
            nrd = 0
            if not fin:
                if "noexec" not in OPT:
                    a(f"s_mov_b64 exec, s[{sVM}:{sVM + 1}]")
                a(f"ds_read_b128 {vr(vb_oth, 4)}, v{vVA} offset:{(tt + 1) * 1024}")
                a(f"ds_read_b128 {vr(vb_oth + 4, 4)}, v{vVA} offset:{(tt + 1) * 1024 + 512}")
                if "noexec" not in OPT:
                    a("s_mov_b64 exec, -1")
                nrd = 2
                if not (last and tt == 6):
                    a(f"ds_read_b128 {vr(kb_cur, 4)}, v{vKA} offset:{(tt + 2) * 1024}")
                    nrd = 3
            exps(SA, 8, 12)
            a(f"s_waitcnt lgkmcnt({nrd})")
            a(f"v_smfmac_f32_32x32x32_bf16 {vr(OA, 16)}, {vr(vb_cur, 4)}, {vr(SA, 8)}, v{vIdx}")
            exps(SA, 12, 16)
            if ffn_mfma and "nomfma" not in OPT:
                if tt % 2 == 0 and "noload" not in OPT:
                    a(f"s_waitcnt vmcnt({RING_N[(ffn_load, dma, ks)]})")
                st = tt % 2
                a(f"v_mfma_f32_32x32x16_bf16 {vr(vF + 16 * (2 * st), 16)}, {ar(ring, 4)}, {ar(ring + 8 + 4 * st, 4)}, {vr(vF + 16 * (2 * st), 16)}")
            exps(SB, 0, 4)
            a(f"v_smfmac_f32_32x32x32_bf16 {vr(OA, 16)}, {vr(vb_cur + 4, 4)}, {vr(SA + 8, 8)}, v{vIdx}")
            exps(SB, 4, 8)
            if not fin:
                a(f"v_mfma_f32_32x32x16_bf16 {vr(SA, 16)}, {vr(kb_nxt, 4)}, {vr(vQ, 4)}, {vr(vM, 16)}")
            exps(SB, 8, 12)
            a(f"v_smfmac_f32_32x32x32_bf16 {vr(OB, 16)}, {vr(vb_cur, 4)}, {vr(SB, 8)}, v{vIdx}")
            exps(SB, 12, 16)
            if ffn_mfma and "nomfma" not in OPT:
                st = tt % 2
                a(f"v_mfma_f32_32x32x16_bf16 {vr(vF + 16 * (2 * st + 1), 16)}, {ar(ring + 4, 4)}, {ar(ring + 8 + 4 * st, 4)}, {vr(vF + 16 * (2 * st + 1), 16)}")
            if ffn_load and tt % 2 == 1 and "noload" not in OPT:
                off = ks * 1024
                a(f"buffer_load_dwordx4 {ar(ring, 4)}, v{vL16}, s[{SWS}:{SWS + 3}], s{sN0} offen offset:{off}")
                a(f"buffer_load_dwordx4 {ar(ring + 4, 4)}, v{vL16}, s[{SWS}:{SWS + 3}], s{sN1} offen offset:{off}")
                a(f"buffer_load_dwordx4 {ar(ring + 8, 4)}, v{vL16}, s[{SWS}:{SWS + 3}], s{sH0} offen offset:{off}")
                a(f"buffer_load_dwordx4 {ar(ring + 12, 4)}, v{vL16}, s[{SWS}:{SWS + 3}], s{sH1} offen offset:{off}")
        if ffn_load:
            for s in (sN0, sN1, sH0, sH1):
                a(f"s_add_u32 s{s}, s{s}, 4096")
        if not last:
            a(f"v_add_u32 v{vKA}, 8192, v{vKA}")
            a(f"v_add_u32 v{vVA}, 8192, v{vVA}")

    global SYNC_N, RING_N
    SYNC_N = {
        (False, True, True): 4 + 12,
        (True, True, True): 32,
        (True, True, False): 28,
    }
    RING_N = {}
    for fl in (True, False):
        for dm in (True, False):
            for ks in range(4):
                RING_N[(fl, dm, ks)] = 4 * (3 - ks) + (4 if dm else 0) + (4 * ks if fl else 0)

    stamp(a, 2)
    if PROF:
        a("s_waitcnt lgkmcnt(0)")
    super_iter(False, True, True, False)
    a(f"s_mov_b32 s{sCnt}, 5")
    a.raw(".p2align 6")
    a.label("K2_loop")
    super_iter(True, True, True, False)
    a(f"s_sub_u32 s{sCnt}, s{sCnt}, 1")
    a(f"s_cmp_lg_u32 s{sCnt}, 0")
    a("s_cbranch_scc1 K2_loop")
    super_iter(True, True, False, False)
    super_iter(True, False, False, True)
    stamp(a, 3)
    a("s_nop 1")
    a(f"v_smfmac_f32_32x32x32_bf16 {vr(OB, 16)}, {vr(vV + 8 + 4, 4)}, {vr(SB + 8, 8)}, v{vIdx}")
    a(f"s_lshl_b32 s{sT0}, s{sQT}, 15")
    a(f"s_lshl_b32 s{sT1}, s{sHead}, 10")
    a(f"s_add_u32 s{sT0}, s{sT0}, s{sT1}")
    a(f"s_add_u32 s{sT0}, s{sT0}, {OF:#x}")
    a(f"s_add_u32 s{sT1}, s{sT0}, 32768")
    for X, O in enumerate((OA, OB)):
        if X == 1:
            a("s_nop 7")
        t = T + 4 * X
        a(f"v_rcp_f32 v{t}, v{O + 8}")
        a("s_nop 0")
        a(f"v_mul_f32 v{t}, v{t}, v{vGq + X}")
        for r in range(8):
            a(f"v_mul_f32 v{O + r}, v{O + r}, v{t}")
        for r in range(4):
            a(f"v_cvt_pk_bf16_f32 v{O + 12 + r}, v{O + 2 * r}, v{O + 2 * r + 1}")
        a(f"buffer_store_dwordx4 {vr(O + 12, 4)}, v{vL16}, s[{SWS}:{SWS + 3}], s{sT0 if X == 0 else sT1} offen")
    a("s_barrier")
    a(f"s_lshl_b32 s{sT0}, s{sW}, 12")
    a(f"v_add_u32 v{T}, s{sT0}, v{vL16}")
    for i in range(4):
        for q in range(4):
            a(f"ds_write_b128 v{T}, {vr(vF + 16 * i + 4 * q, 4)} offset:{i * 16384 + q * 1024}")
    a("s_waitcnt lgkmcnt(0)")
    a("s_barrier")
    a(f"s_lshl_b32 s{sT0}, s{sW}, 14")
    a(f"v_add_u32 v{T}, s{sT0}, v{vL16}")
    for w in range(4):
        for q in range(4):
            a(f"ds_read_b128 {vr(vF + 16 * w + 4 * q, 4)}, v{T} offset:{w * 4096 + q * 1024}")
    a(f"s_lshl_b32 s{sT0}, s2, 14")
    a(f"s_lshl_b32 s{sT1}, s{sW}, 12")
    a(f"s_add_u32 s{sT0}, s{sT0}, s{sT1}")
    a(f"s_add_u32 s{sT0}, s{sT0}, {F2:#x}")
    a("s_waitcnt lgkmcnt(0)")
    for r in range(0, 16, 2):
        a(f"v_pk_add_f32 {vr(vF + r, 2)}, {vr(vF + r, 2)}, {vr(vF + 16 + r, 2)}")
        a(f"v_pk_add_f32 {vr(vF + 32 + r, 2)}, {vr(vF + 32 + r, 2)}, {vr(vF + 48 + r, 2)}")
    for r in range(0, 16, 2):
        a(f"v_pk_add_f32 {vr(vF + r, 2)}, {vr(vF + r, 2)}, {vr(vF + 32 + r, 2)}")
    for q in range(4):
        a(f"buffer_store_dwordx4 {vr(vF + 4 * q, 4)}, v{vL16}, s[{SWS}:{SWS + 3}], s{sT0} offen offset:{q * 1024}")
    if PROF:
        a("s_waitcnt vmcnt(0)")
    stamp(a, 4)
    stamp_rt(a, 5)
    dump(a, 1, SWS, sW)
    a.label("K2_end")
    a("s_endpgm")


def gen_k3(a):
    kernel_head(a, "k3_kernel")
    SWS, SB2, SO = 8, 12, 16
    sW, sFR, sFC, sT0, sT1, sT2, sST, sNT, sA, sB = 20, 21, 22, 23, 24, 25, 26, 27, 28, 29
    vL, vL16, vTmp, vG = 1, 2, 3, 8
    vAcc = 16
    vB2 = 32
    vA = 64
    a("s_cmp_ge_u32 s2, 256")
    a("s_cbranch_scc1 K3_end")
    stamp_rt(a, 0)
    stamp(a, 1)
    a("s_load_dwordx2 s[4:5], s[0:1], 88")
    a("s_load_dwordx2 s[6:7], s[0:1], 56")
    a("s_load_dwordx2 s[30:31], s[0:1], 72")
    a(f"v_lshrrev_b32 v{vTmp}, 6, v0")
    a(f"v_and_b32 v{vL}, 63, v0")
    a(f"v_readfirstlane_b32 s{sW}, v{vTmp}")
    a(f"v_lshlrev_b32 v{vL16}, 4, v{vL}")
    a(f"""
    s_and_b32 s{sT0}, s2, 7
    s_lshr_b32 s{sT1}, s2, 3
    s_lshl_b32 s{sFR}, s{sT0}, 2
    s_and_b32 s{sT2}, s{sT1}, 3
    s_add_u32 s{sFR}, s{sFR}, s{sT2}
    s_lshr_b32 s{sFC}, s{sT1}, 2
    s_lshl_b32 s{sST}, s{sFR}, 1
    s_lshr_b32 s{sT0}, s{sW}, 1
    s_add_u32 s{sST}, s{sST}, s{sT0}
    s_lshl_b32 s{sNT}, s{sFC}, 1
    s_and_b32 s{sT0}, s{sW}, 1
    s_add_u32 s{sNT}, s{sNT}, s{sT0}
    s_lshl_b32 s{sA}, s{sNT}, 15
    s_add_u32 s{sA}, s{sA}, {WOF:#x}
    s_lshl_b32 s{sB}, s{sST}, 15
    s_add_u32 s{sB}, s{sB}, {OF:#x}
    """)
    T = vTmp
    a(f"v_and_b32 v{T}, 31, v{vL}")
    a(f"v_lshlrev_b32 v{T + 1}, 2, v{T}")
    a(f"v_lshrrev_b32 v{T + 2}, 5, v{vL}")
    a(f"v_lshlrev_b32 v{T + 3}, 3, v{T + 2}")
    a(f"v_lshlrev_b32 v{T + 4}, 10, v{T}")
    a(f"v_lshl_add_u32 v{T + 4}, v{T + 2}, 4, v{T + 4}")
    a("s_waitcnt lgkmcnt(0)")
    srd(a, SWS, 4, WS_BYTES)
    srd(a, SB2, 6, 1024)
    srd(a, SO, 30, 2 * MB)
    a(f"s_lshl_b32 s{sT0}, s2, 14")
    a(f"s_lshl_b32 s{sT1}, s{sW}, 12")
    a(f"s_add_u32 s{sT0}, s{sT0}, s{sT1}")
    a(f"s_add_u32 s{sT0}, s{sT0}, {F2:#x}")
    for q in range(4):
        a(f"buffer_load_dwordx4 {vr(vAcc + 4 * q, 4)}, v{vL16}, s[{SWS}:{SWS + 3}], s{sT0} offen offset:{q * 1024}")
    a(f"s_lshl_b32 s{sT1}, s{sST}, 7")
    a(f"s_add_u32 s{sT1}, s{sT1}, {GG:#x}")
    a(f"buffer_load_dword v{vG}, v{T + 1}, s[{SWS}:{SWS + 3}], s{sT1} offen")
    a(f"s_lshl_b32 s{sT1}, s{sNT}, 6")
    for g in range(4):
        a(f"buffer_load_dwordx2 {vr(vB2 + 2 * g, 2)}, v{T + 3}, s[{SB2}:{SB2 + 3}], s{sT1} offen offset:{16 * g}")
    DEPTH = 24

    def ld(ks):
        if ks % 4 == 0 and ks > 0:
            a(f"s_add_u32 s{sA}, s{sA}, 4096")
            a(f"s_add_u32 s{sB}, s{sB}, 4096")
        a(f"buffer_load_dwordx4 {vr(vA + 4 * ks, 4)}, v{vL16}, s[{SWS}:{SWS + 3}], s{sA} offen offset:{(ks % 4) * 1024}")
        a(f"buffer_load_dwordx4 {ar(4 * ks, 4)}, v{vL16}, s[{SWS}:{SWS + 3}], s{sB} offen offset:{(ks % 4) * 1024}")
    for ks in range(DEPTH):
        ld(ks)
    issued = DEPTH
    stamp(a, 2)
    for ks in range(32):
        a(f"s_waitcnt vmcnt({2 * (issued - ks - 1)})")
        a(f"v_mfma_f32_32x32x16_bf16 {vr(vAcc, 16)}, {vr(vA + 4 * ks, 4)}, {ar(4 * ks, 4)}, {vr(vAcc, 16)}")
        if issued < 32:
            ld(issued)
            issued += 1
        if ks == 12:
            for g in range(4):
                d = vB2 + 8 + 4 * g
                a(f"v_lshlrev_b32 v{d}, 16, v{vB2 + 2 * g}")
                a(f"v_and_b32 v{d + 1}, 0xffff0000, v{vB2 + 2 * g}")
                a(f"v_lshlrev_b32 v{d + 2}, 16, v{vB2 + 2 * g + 1}")
                a(f"v_and_b32 v{d + 3}, 0xffff0000, v{vB2 + 2 * g + 1}")
            a(f"v_sub_f32 v{vG}, 1.0, v{vG}")
    a(f"s_lshl_b32 s{sT0}, s{sST}, 15")
    a(f"s_lshl_b32 s{sT1}, s{sNT}, 6")
    a(f"s_add_u32 s{sT0}, s{sT0}, s{sT1}")
    stamp(a, 3)
    a("s_nop 15")
    for r in range(16):
        a(f"v_fmac_f32 v{vAcc + r}, v{vG}, v{vB2 + 8 + r}")
    for r in range(8):
        a(f"v_cvt_pk_bf16_f32 v{vB2 + r}, v{vAcc + 2 * r}, v{vAcc + 2 * r + 1}")
    a("s_nop 1")
    for p in range(2):
        a(f"v_permlane32_swap_b32 v{vB2 + 4 * p}, v{vB2 + 4 * p + 2}")
        a(f"v_permlane32_swap_b32 v{vB2 + 4 * p + 1}, v{vB2 + 4 * p + 3}")
    a("s_nop 1")
    for p in range(2):
        a(f"buffer_store_dwordx4 {vr(vB2 + 4 * p, 4)}, v{T + 4}, s[{SO}:{SO + 3}], s{sT0} offen offset:{32 * p}")
    if PROF:
        a("s_waitcnt vmcnt(0)")
    stamp(a, 4)
    stamp_rt(a, 5)
    dump(a, 2, SWS, sW)
    a.label("K3_end")
    a("s_endpgm")


def main():
    a = Asm()
    a.raw("; @launch kernel=k1_kernel grid=(256,1,1) block=(256,1,1) lds=163840")
    a.raw("; @launch kernel=k2_kernel grid=(256,1,1) block=(256,1,1) lds=131072")
    a.raw("; @launch kernel=k3_kernel grid=(256,1,1) block=(256,1,1) lds=0")
    a.raw('.amdgcn_target "amdgcn-amd-amdhsa--gfx950"')
    a.raw(".text")
    gen_k1(a)
    gen_k2(a)
    gen_k3(a)
    s = a.text()
    s += kernel_desc("k1_kernel", 384, 256)
    s += kernel_desc("k2_kernel", 320, 256)
    s += kernel_desc("k3_kernel", 320, 192)
    out = sys.argv[1] if len(sys.argv) > 1 else f"cdna_kernels/{NAME}.s"
    open(out, "w").write(s)


main()
```
